```python
import torch

def _softmax(x, axis=-1):
    return torch.softmax(x, dim=axis)

def _gelu(x):
    return torch.nn.functional.gelu(x, approximate='tanh')

def _silu(x):
    return torch.nn.functional.silu(x)

def _sigmoid(x):
    return torch.sigmoid(x)

def _layernorm(x, axis=-1, eps=1e-05):
    m = x.mean(dim=axis, keepdim=True)
    v = x.var(dim=axis, keepdim=True, unbiased=False)
    return (x - m) / torch.sqrt(v + eps)

def _scatter_add(tgt, idx, src, axis=0):
    return tgt.clone().index_add_(axis, idx, src)

def _segment_sum(src, seg, n):
    out = torch.zeros((n,) + src.shape[1:], dtype=src.dtype)
    return out.index_add_(0, seg, src)

def _pad(x, pw):
    flat = tuple((v for pair in reversed(pw) for v in pair))
    return torch.nn.functional.pad(x, flat)
kernel_name = 'gated_mix__softmax_full_mha__mixer_gmlp__prompt'

def setup_inputs():

    _w = lambda a: (lambda t: t.to(torch.bfloat16) if t.is_floating_point() else t)(torch.as_tensor(a))

    def _A_setup():
        B, S, D = (1, 2048, 640)
        return {'x': _w((lambda *s: torch.randn(*s, dtype=torch.bfloat16) * 0.05)(B, S, D)), 'wqkv': _w((lambda *s: torch.randn(*s, dtype=torch.bfloat16) * 0.8)(D, 3 * D)), 'wo': _w((lambda *s: torch.randn(*s, dtype=torch.bfloat16) * 0.1)(D, D))}
    _A_in = _A_setup()

    def _B_setup():
        B, S, D, F = (1, 2048, 640, 1728)
        Fh = F // 2
        return {'x': _w((lambda *s: torch.randn(*s, dtype=torch.bfloat16) * 0.05)(B, S, D)), 'w_in': _w((lambda *s: torch.randn(*s, dtype=torch.bfloat16) * 0.4)(D, 2 * Fh)), 'w_sp': _w(0.01 * (lambda *s: torch.randn(*s, dtype=torch.bfloat16) * 0.4)(S, S)), 'b_sp': _w(1.0 + 0.01 * (lambda *s: torch.randn(*s, dtype=torch.bfloat16) * 0.05)(S)), 'w_out': _w((lambda *s: torch.randn(*s, dtype=torch.bfloat16) * 0.05)(Fh, D))}
    _B_in = _B_setup()
    return {'A_x': _A_in['x'], 'A_wqkv': _A_in['wqkv'], 'A_wo': _A_in['wo'], 'B_x': _B_in['x'], 'B_w_in': _B_in['w_in'], 'B_w_sp': _B_in['w_sp'], 'B_b_sp': _B_in['b_sp'], 'B_w_out': _B_in['w_out'], 'gate_w': _w((lambda *s: torch.randn(*s, dtype=torch.bfloat16) * 0.05)(640) * 16.0)}

def reference(A_x, A_wqkv, A_wo, B_x, B_w_in, B_w_sp, B_b_sp, B_w_out, gate_w):

    def _A_ref(x, wqkv, wo):
        B, S, D = x.shape
        H = 32
        Dh = D // H
        qkv = (lambda x, *d: x.permute(*d))((x @ wqkv).reshape(B, S, 3, H, Dh), 2, 0, 3, 1, 4)
        q, k, v = (qkv[0], qkv[1], qkv[2])
        scale = Dh ** (-0.5)
        scores = torch.einsum('bhqd,bhkd->bhqk', q, k) * scale
        p = _softmax(scores, axis=-1)
        o = torch.einsum('bhqk,bhkd->bhqd', p, v)
        return (lambda x, *d: x.permute(*d))(o, 0, 2, 1, 3).reshape(B, S, D) @ wo

    def _B_ref(x, w_in, w_sp, b_sp, w_out):
        B, S, D = x.shape
        F = w_in.shape[-1]
        Fh = F // 2
        z = _gelu(torch.einsum('bsd,df->bsf', x, w_in))
        z1 = z[..., :Fh].clone()
        z2 = _layernorm(z[..., Fh:], axis=-1)
        g = torch.einsum('ts,bsf->btf', w_sp, z2) + b_sp[None, :, None]
        return torch.einsum('bsf,fd->bsd', z1 * g, w_out)
    x = A_x
    g = _sigmoid((x * gate_w).sum(-1, keepdims=True))
    a = _A_ref(x, A_wqkv, A_wo)
    b = _B_ref(x, B_w_in, B_w_sp, B_b_sp, B_w_out)
    return g * a + (1 - g) * b
```

```python
class Asm:
    def __init__(self):
        self.lines = []
        self.uid = 0
    def __call__(self, s):
        for ln in s.split("\n"):
            self.lines.append("    " + ln.strip() if ln.strip() and not ln.strip().endswith(":") else ln.strip())
    def label(self, name):
        self.lines.append(name + ":")
    def newlabel(self, base):
        self.uid += 1
        return f"{base}_{self.uid}"
    def comment(self, s):
        self.lines.append("    ; " + s)
    def text(self):
        return "\n".join(self.lines) + "\n"

def vr(a, n=1):
    return f"v{a}" if n == 1 else f"v[{a}:{a+n-1}]"
def sr(a, n=1):
    return f"s{a}" if n == 1 else f"s[{a}:{a+n-1}]"

def kernel_begin(A, name):
    A(".text")
    A(f".globl {name}")
    A.lines.append(".p2align 8")
    A(f".type {name},@function")
    A.label(name)

def kernel_desc(A, name, nvgpr, nsgpr, accum=None):
    if accum is None:
        accum = (nvgpr + 3) // 4 * 4
    A.lines.append('.section .rodata,"a"')
    A.lines.append(".p2align 6")
    A.lines.append(f".amdhsa_kernel {name}")
    A.lines.append(f"  .amdhsa_next_free_vgpr {nvgpr}")
    A.lines.append(f"  .amdhsa_next_free_sgpr {nsgpr}")
    A.lines.append(f"  .amdhsa_accum_offset {accum}")
    A.lines.append("  .amdhsa_group_segment_fixed_size 0")
    A.lines.append("  .amdhsa_kernarg_size 96")
    A.lines.append("  .amdhsa_user_sgpr_count 2")
    A.lines.append("  .amdhsa_user_sgpr_kernarg_segment_ptr 1")
    A.lines.append("  .amdhsa_system_sgpr_workgroup_id_x 1")
    A.lines.append(".end_amdhsa_kernel")

def srd(A, d, base_lo, base_hi, off, size):
    if off:
        A(f"s_add_u32 s{d}, s{base_lo}, {off}")
        A(f"s_addc_u32 s{d+1}, s{base_hi}, 0")
    else:
        A(f"s_mov_b32 s{d}, s{base_lo}")
        A(f"s_mov_b32 s{d+1}, s{base_hi}")
    A(f"s_mov_b32 s{d+2}, {size}")
    A(f"s_mov_b32 s{d+3}, 0x20000")

import struct
def f32bits(x):
    return struct.unpack("<I", struct.pack("<f", x))[0]
def fhex(x):
    return f"0x{f32bits(x):08x}"
```

```python
from asmlib import *

class Gemm:
    def __init__(self, A, nw, BM, WM, WN, TM, TN, nslots, lds_base, v0, s0, sW, sWM, sWN, vLane):
        self.A = A; self.nw = nw; self.BM = BM; self.WM = WM; self.WN = WN; self.TM = TM; self.TN = TN
        self.nslots = nslots; self.lds_base = lds_base
        self.a_per = BM // 8 // nw
        self.b_per = 16 // nw
        assert self.a_per * 8 * nw == BM and self.b_per * nw == 16
        self.ABYTES = BM * 128
        self.SLOT = self.ABYTES + 16384
        self.sW, self.sWM, self.sWN, self.vLane = sW, sWM, sWN, vLane
        v = v0
        self.vDA = v; v += self.a_per
        self.vDB = v; v += self.b_per
        self.vXb = v; v += 4
        self.vWb = v; v += TN
        self.vXc = v; v += 4
        self.vWc = v; v += TN
        v = (v + 3) // 4 * 4
        self.fsz = 4 * (TM + TN)
        self.vF = v; v += 2 * self.fsz
        self.vend = v
        s = s0
        self.sM0A = s; s += 1
        self.sM0B = s; s += 1
        self.sSlot = s; s += nslots
        self.sOffA = s; s += 1
        self.sOffB = s; s += 1
        self.sT = s; s += 2
        self.send = s
    def Xf(self, buf, mb): return self.vF + buf * self.fsz + mb * 4
    def Wf(self, buf, nb): return self.vF + buf * self.fsz + 4 * self.TM + nb * 4

    def setup_dma(self, sRowBase, pitchA, sColBytes, pitchB, t0=2):
        A = self.A; L = self.vLane; sT = self.sT
        def mul(dst, src, pitch):
            if isinstance(pitch, int):
                A(f"s_mov_b32 s{sT+1}, {pitch}")
                A(f"v_mul_lo_u32 v{dst}, v{src}, s{sT+1}")
            else:
                A(f"v_mul_lo_u32 v{dst}, v{src}, s{pitch[1]}")
        A(f"v_lshrrev_b32 v{t0}, 3, v{L}")
        A(f"v_and_b32 v{t0+1}, 7, v{L}")
        A(f"s_mul_i32 s{sT}, s{self.sW}, {8*self.a_per}")
        A(f"s_add_u32 s{sT}, s{sT}, s{sRowBase}")
        A(f"v_add_u32 v{t0+2}, s{sT}, v{t0}")
        mul(t0 + 2, t0 + 2, pitchA)
        A(f"v_lshrrev_b32 v{t0+3}, 1, v{t0}")
        for j in range(self.a_per):
            if self.a_per % 2 == 0:
                par = j & 1
                if par:
                    A(f"v_or_b32 v{t0+4}, 4, v{t0+3}")
                    A(f"v_xor_b32 v{t0+4}, v{t0+4}, v{t0+1}")
                else:
                    A(f"v_xor_b32 v{t0+4}, v{t0+3}, v{t0+1}")
            else:
                A(f"s_mul_i32 s{sT}, s{self.sW}, {self.a_per}")
                A(f"s_add_u32 s{sT}, s{sT}, {j}")
                A(f"s_and_b32 s{sT}, s{sT}, 1")
                A(f"s_lshl_b32 s{sT}, s{sT}, 2")
                A(f"v_or_b32 v{t0+4}, s{sT}, v{t0+3}")
                A(f"v_xor_b32 v{t0+4}, v{t0+4}, v{t0+1}")
            A(f"v_lshl_add_u32 v{t0+4}, v{t0+4}, 4, v{t0+2}")
            if isinstance(pitchA, int):
                A(f"v_add_u32 v{self.vDA+j}, {j*(8*pitchA-1024)}, v{t0+4}")
            else:
                raise NotImplementedError
        A(f"v_lshrrev_b32 v{t0}, 4, v{L}")
        A(f"v_and_b32 v{t0+1}, 15, v{L}")
        A(f"v_lshlrev_b32 v{t0+3}, 2, v{t0}")
        A(f"v_xor_b32 v{t0+1}, v{t0+1}, v{t0+3}")
        A(f"s_mul_i32 s{sT}, s{self.sW}, {4*self.b_per}")
        A(f"v_add_u32 v{t0+2}, s{sT}, v{t0}")
        mul(t0 + 2, t0 + 2, pitchB)
        A(f"v_lshl_add_u32 v{t0+2}, v{t0+1}, 4, v{t0+2}")
        A(f"v_add_u32 v{self.vDB}, s{sColBytes}, v{t0+2}")
        for j in range(1, self.b_per):
            if isinstance(pitchB, int):
                A(f"v_add_u32 v{self.vDB+j}, {j*(4*pitchB-1024)}, v{self.vDB}")
            else:
                A(f"s_lshl_b32 s{sT}, s{pitchB[1]}, 2")
                A(f"s_sub_u32 s{sT}, s{sT}, 1024")
                A(f"s_mul_i32 s{sT}, s{sT}, {j}")
                A(f"v_add_u32 v{self.vDB+j}, s{sT}, v{self.vDB}")
        A(f"s_mul_i32 s{self.sM0A}, s{self.sW}, {self.a_per*1024}")
        A(f"s_mul_i32 s{self.sM0B}, s{self.sW}, {self.b_per*1024}")
        A(f"s_add_u32 s{self.sM0B}, s{self.sM0B}, {self.ABYTES}")

    def init_slots(self):
        for i in range(self.nslots):
            self.A(f"s_mov_b32 s{self.sSlot+i}, {self.lds_base + i*self.SLOT}")
    def rotate(self):
        A = self.A; n = self.nslots
        A(f"s_mov_b32 s{self.sT}, s{self.sSlot}")
        for i in range(n - 1):
            A(f"s_mov_b32 s{self.sSlot+i}, s{self.sSlot+i+1}")
        A(f"s_mov_b32 s{self.sSlot+n-1}, s{self.sT}")

    def issue(self, slot_idx, srdA, srdB, do_a=True, do_b=True):
        A = self.A
        if do_a:
            A(f"s_add_u32 m0, s{self.sSlot+slot_idx}, s{self.sM0A}")
            A("s_nop 0")
            for j in range(self.a_per):
                A(f"buffer_load_dwordx4 v{self.vDA+j}, s[{srdA}:{srdA+3}], s{self.sOffA} offen offset:{j*1024} lds")
        if do_b:
            A(f"s_add_u32 m0, s{self.sSlot+slot_idx}, s{self.sM0B}")
            A("s_nop 0")
            for j in range(self.b_per):
                A(f"buffer_load_dwordx4 v{self.vDB+j}, s[{srdB}:{srdB+3}], s{self.sOffB} offen offset:{j*1024} lds")
    @property
    def ndma(self): return self.a_per + self.b_per

    def setup_reads(self, t0=2):
        A = self.A; L = self.vLane; sT = self.sT
        A(f"v_and_b32 v{t0}, 31, v{L}")
        A(f"s_mul_i32 s{sT}, s{self.sWM}, {32*self.TM}")
        A(f"v_add_u32 v{t0}, s{sT}, v{t0}")
        A(f"v_lshlrev_b32 v{t0}, 7, v{t0}")
        A(f"v_lshrrev_b32 v{t0+1}, 5, v{L}")
        A(f"v_bfe_u32 v{t0+2}, v{L}, 1, 3")
        for kk in range(4):
            A(f"v_or_b32 v{t0+3}, {2*kk}, v{t0+1}")
            A(f"v_xor_b32 v{t0+3}, v{t0+3}, v{t0+2}")
            A(f"v_lshl_add_u32 v{self.vXb+kk}, v{t0+3}, 4, v{t0}")
        A(f"v_lshrrev_b32 v{t0}, 5, v{L}")
        A(f"v_bfe_u32 v{t0+1}, v{L}, 2, 2")
        A(f"v_lshl_add_u32 v{t0+2}, v{t0}, 3, v{t0+1}")
        A(f"v_lshlrev_b32 v{t0+2}, 8, v{t0+2}")
        A(f"v_bfe_u32 v{t0+3}, v{L}, 4, 1")
        A(f"v_lshl_add_u32 v{t0+2}, v{t0+3}, 5, v{t0+2}")
        A(f"v_and_b32 v{t0+3}, 1, v{L}")
        A(f"v_lshl_add_u32 v{t0+2}, v{t0+3}, 4, v{t0+2}")
        A(f"v_bfe_u32 v{t0+3}, v{L}, 1, 1")
        A(f"v_lshl_add_u32 v{t0+2}, v{t0+3}, 3, v{t0+2}")
        A(f"v_add_u32 v{t0+2}, {self.ABYTES}, v{t0+2}")
        A(f"s_mul_i32 s{sT}, s{self.sWN}, {self.TN}")
        for nb in range(self.TN):
            A(f"s_add_u32 s{sT+1}, s{sT}, {nb}")
            A(f"v_xor_b32 v{t0+3}, s{sT+1}, v{t0+1}")
            A(f"v_lshl_add_u32 v{self.vWb+nb}, v{t0+3}, 6, v{t0+2}")

    def cur_addrs(self):
        A = self.A
        for kk in range(4):
            A(f"v_add_u32 v{self.vXc+kk}, s{self.sSlot}, v{self.vXb+kk}")
        for nb in range(self.TN):
            A(f"v_add_u32 v{self.vWc+nb}, s{self.sSlot}, v{self.vWb+nb}")
    def reads(self, kk, buf):
        A = self.A
        for mb in range(self.TM):
            A(f"ds_read_b128 {vr(self.Xf(buf,mb),4)}, v{self.vXc+kk} offset:{mb*4096}")
        for nb in range(self.TN):
            A(f"ds_read_b64_tr_b16 {vr(self.Wf(buf,nb),2)}, v{self.vWc+nb} offset:{kk*4096}")
            A(f"ds_read_b64_tr_b16 {vr(self.Wf(buf,nb)+2,2)}, v{self.vWc+nb} offset:{kk*4096+1024}")
    @property
    def nreads(self): return self.TM + 2 * self.TN
    def mfmas(self, buf, acc):
        for nb in range(self.TN):
            for mb in range(self.TM):
                self.A(f"v_mfma_f32_32x32x16_bf16 {vr(acc(nb,mb),16)}, {vr(self.Wf(buf,nb),4)}, {vr(self.Xf(buf,mb),4)}, {vr(acc(nb,mb),16)}")
    def compute_step(self, acc, mid=None):
        A = self.A; n = self.nreads
        self.reads(0, 0)
        if mid: mid()
        self.reads(1, 1)
        A(f"s_waitcnt lgkmcnt({n})")
        self.mfmas(0, acc)
        self.reads(2, 0)
        A(f"s_waitcnt lgkmcnt({n})")
        self.mfmas(1, acc)
        self.reads(3, 1)
        A(f"s_waitcnt lgkmcnt({n})")
        self.mfmas(0, acc)
        A("s_waitcnt lgkmcnt(0)")
        self.mfmas(1, acc)
```

```python
from asmlib import *
import math

WS_QKV = 0
QKV_HEAD = 294912
QKV_SIZE = 32 * QKV_HEAD
WS_Z = 0x900000
Z_SIZE = 2048 * 1728 * 2
WS_Z2N = 0x1000000
Z2N_SIZE = 2048 * 864 * 2
WS_O = 0x1400000
O_SIZE = 2048 * 640 * 2
WS_U = 0x1800000
U_SIZE = 2048 * 864 * 2
WS_GATE = 0x1C00000
GATE_SIZE = 2048 * 4

QSCALE = (20 ** -0.5) * math.log2(math.e)
LOG2E = math.log2(math.e)
GC0 = -2.0 * math.sqrt(2.0 / math.pi) * LOG2E
GC1 = GC0 * 0.044715

def gelu_pk(A, regs, tmp, cvec):
    c1, c0, one = cvec
    n = len(regs)
    t = [tmp + 2 * i for i in range(n)]
    for i, r in enumerate(regs):
        A(f"v_pk_mul_f32 {vr(t[i],2)}, {vr(r,2)}, {vr(r,2)}")
    for i, r in enumerate(regs):
        A(f"v_pk_fma_f32 {vr(t[i],2)}, {vr(t[i],2)}, {vr(c1,2)}, {vr(c0,2)}")
    for i, r in enumerate(regs):
        A(f"v_pk_mul_f32 {vr(t[i],2)}, {vr(t[i],2)}, {vr(r,2)}")
    for i in range(n):
        A(f"v_exp_f32 v{t[i]}, v{t[i]}")
        A(f"v_exp_f32 v{t[i]+1}, v{t[i]+1}")
    A("s_nop 0")
    for i in range(n):
        A(f"v_pk_add_f32 {vr(t[i],2)}, {vr(t[i],2)}, {vr(one,2)}")
    for i in range(n):
        A(f"v_rcp_f32 v{t[i]}, v{t[i]}")
        A(f"v_rcp_f32 v{t[i]+1}, v{t[i]+1}")
    A("s_nop 0")
    for i, r in enumerate(regs):
        A(f"v_pk_mul_f32 {vr(r,2)}, {vr(r,2)}, {vr(t[i],2)}")

def gen_k1(A, name="k1_kernel"):
    kernel_begin(A, name)
    NST = 10
    SLOT = 49152
    vLane, vTmp = 1, 2
    vDA = 10
    vDB = 14
    vXb = 16
    vWb = 20
    vXc = 22
    vWc = 26
    vF = 28
    vAcc = 60
    vE = 124
    NV = 168
    def Xf(buf, mb): return vF + buf * 16 + mb * 4
    def Wf(buf, nb): return vF + buf * 16 + 8 + nb * 4
    def acc(nb, mb): return vAcc + (nb * 2 + mb) * 16

    A("s_cmp_ge_u32 s2, 256")
    A(f"s_cbranch_scc1 {name}_end")
    A("s_load_dwordx4 s[36:39], s[0:1], 0")
    A("s_load_dwordx4 s[40:43], s[0:1], 24")
    A("s_load_dwordx2 s[44:45], s[0:1], 64")
    A("s_load_dwordx2 s[46:47], s[0:1], 88")
    A(f"v_and_b32 v{vLane}, 63, v0")
    A("v_lshrrev_b32 v2, 6, v0")
    A("s_and_b32 s48, s2, 7")
    A("v_readfirstlane_b32 s20, v2")
    A("s_lshr_b32 s49, s2, 3")
    A("s_lshr_b32 s21, s20, 1")
    A("s_and_b32 s22, s20, 1")
    A("s_and_b32 s23, s48, 1")
    A("s_lshl_b32 s23, s23, 2")
    A("s_and_b32 s50, s49, 3")
    A("s_add_u32 s23, s23, s50")
    A("s_lshr_b32 s50, s48, 1")
    A("s_xor_b32 s50, s50, s48")
    A("s_and_b32 s50, s50, 1")
    A("s_mul_i32 s27, s50, 5")
    A("s_lshr_b32 s51, s49, 2")
    A("s_lshr_b32 s50, s48, 1")
    A("s_and_b32 s50, s50, 1")
    A("s_waitcnt lgkmcnt(0)")
    A("s_cmp_ge_u32 s48, 4")
    A(f"s_cbranch_scc1 {name}_zsetup")
    A("s_mov_b32 s25, 0")
    A("s_lshl_b32 s24, s50, 3")
    A("s_add_u32 s24, s24, s51")
    srd(A, 8, 36, 37, 0, 2048 * 1280)
    srd(A, 12, 38, 39, 0, 640 * 3840)
    srd(A, 16, 46, 47, WS_QKV, QKV_SIZE)
    A("s_movk_i32 s26, 3840")
    A("s_mul_i32 s52, s24, 240")
    A(f"s_branch {name}_common")
    A.label(f"{name}_zsetup")
    A("s_cmp_ge_u32 s49, 28")
    A(f"s_cbranch_scc1 {name}_gate")
    A("s_mov_b32 s25, 1")
    A("s_mul_i32 s24, s50, 7")
    A("s_add_u32 s24, s24, s51")
    srd(A, 8, 36, 37, 0, 2048 * 1280)
    srd(A, 12, 42, 43, 0, 640 * 3456)
    srd(A, 16, 46, 47, WS_Z, Z_SIZE)
    A("s_movk_i32 s26, 3456")
    A("s_lshl_b32 s52, s24, 8")
    A.label(f"{name}_common")
    A(f"v_lshrrev_b32 v2, 3, v{vLane}")
    A(f"v_and_b32 v3, 7, v{vLane}")
    A("s_lshl_b32 s53, s23, 8")
    A("s_lshl_b32 s54, s20, 5")
    A("s_add_u32 s53, s53, s54")
    A("v_add_u32 v4, s53, v2")
    A("s_movk_i32 s54, 1280")
    A("v_mul_lo_u32 v4, v4, s54")
    A("v_lshrrev_b32 v5, 1, v2")
    for j in range(4):
        if j & 1:
            A("v_or_b32 v6, 4, v5")
            A("v_xor_b32 v6, v6, v3")
        else:
            A("v_xor_b32 v6, v5, v3")
        A(f"v_lshl_add_u32 v6, v6, 4, v4")
        if j:
            A(f"v_add_u32 v{vDA+j}, {j*(8*1280-1024)}, v6")
        else:
            A(f"v_mov_b32 v{vDA}, v6")
    A(f"v_lshrrev_b32 v2, 4, v{vLane}")
    A(f"v_and_b32 v3, 15, v{vLane}")
    A("v_lshlrev_b32 v5, 2, v2")
    A("v_xor_b32 v3, v3, v5")
    A("s_lshl_b32 s53, s20, 3")
    A("v_add_u32 v4, s53, v2")
    A("v_mul_lo_u32 v4, v4, s26")
    A("v_lshl_add_u32 v4, v3, 4, v4")
    A(f"v_add_u32 v{vDB}, s52, v4")
    A("s_lshl_b32 s53, s26, 2")
    A("s_sub_u32 s53, s53, 1024")
    A(f"v_add_u32 v{vDB+1}, s53, v{vDB}")
    A("s_lshl_b32 s33, s26, 6")
    A("s_lshl_b32 s34, s20, 12")
    A("s_lshl_b32 s35, s20, 11")
    A("s_add_u32 s35, s35, 32768")
    A("s_mov_b32 s30, 0")
    A(f"s_mov_b32 s31, {SLOT}")
    A(f"s_mov_b32 s32, {2*SLOT}")

    def issue(slot_s):
        A("s_lshl_b32 s28, s27, 7")
        A("s_mul_i32 s29, s27, s33")
        A(f"s_add_u32 m0, s{slot_s}, s34")
        A("s_add_u32 s27, s27, 1")
        for j in range(4):
            A(f"buffer_load_dwordx4 v{vDA+j}, s[8:11], s28 offen offset:{j*1024} lds")
        A(f"s_add_u32 m0, s{slot_s}, s35")
        A("s_cmp_eq_u32 s27, 10")
        for j in range(2):
            A(f"buffer_load_dwordx4 v{vDB+j}, s[12:15], s29 offen offset:{j*1024} lds")
        A("s_cselect_b32 s27, 0, s27")
    issue(30)
    issue(31)
    A(f"v_and_b32 v2, 31, v{vLane}")
    A("s_lshl_b32 s53, s21, 6")
    A("v_add_u32 v2, s53, v2")
    A("v_lshlrev_b32 v2, 7, v2")
    A(f"v_lshrrev_b32 v3, 5, v{vLane}")
    A(f"v_bfe_u32 v4, v{vLane}, 1, 3")
    for kk in range(4):
        A(f"v_or_b32 v5, {2*kk}, v3")
        A("v_xor_b32 v5, v5, v4")
        A(f"v_lshl_add_u32 v{vXb+kk}, v5, 4, v2")
    A(f"v_lshrrev_b32 v2, 5, v{vLane}")
    A(f"v_bfe_u32 v3, v{vLane}, 2, 2")
    A("v_lshl_add_u32 v4, v2, 3, v3")
    A("v_lshlrev_b32 v4, 8, v4")
    A(f"v_bfe_u32 v5, v{vLane}, 4, 1")
    A("v_lshl_add_u32 v4, v5, 5, v4")
    A(f"v_and_b32 v5, 1, v{vLane}")
    A("v_lshl_add_u32 v4, v5, 4, v4")
    A(f"v_bfe_u32 v5, v{vLane}, 1, 1")
    A("v_lshl_add_u32 v4, v5, 3, v4")
    A("v_add_u32 v4, 32768, v4")
    A("s_lshl_b32 s53, s22, 1")
    for nb in range(2):
        A(f"s_add_u32 s54, s53, {nb}")
        A("v_xor_b32 v5, s54, v3")
        A(f"v_lshl_add_u32 v{vWb+nb}, v5, 6, v4")
    for i in range(64):
        A(f"v_mov_b32 v{vAcc+i}, 0")
    A("s_mov_b32 s55, 0")
    A("s_mov_b32 s56, 1")
    A("s_cmp_eq_u32 s25, 1")
    A("s_cselect_b32 s57, s24, 0")
    A("s_cmp_eq_u32 s57, 13")
    A("s_cselect_b32 s57, s22, 0")
    A.lines.append(".p2align 6")
    A.label(f"{name}_loop")
    A("s_cmp_eq_u32 s55, 9")
    A(f"s_cbranch_scc1 {name}_w0")
    A("s_waitcnt vmcnt(6)")
    A(f"s_branch {name}_w1")
    A.label(f"{name}_w0")
    A("s_waitcnt vmcnt(0)")
    A.label(f"{name}_w1")
    A("s_barrier")
    for kk in range(4):
        A(f"v_add_u32 v{vXc+kk}, s30, v{vXb+kk}")
    for nb in range(2):
        A(f"v_add_u32 v{vWc+nb}, s30, v{vWb+nb}")
    def reads(kk, buf):
        for mb in range(2):
            A(f"ds_read_b128 {vr(Xf(buf,mb),4)}, v{vXc+kk} offset:{mb*4096}")
        for nb in range(2):
            A(f"ds_read_b64_tr_b16 {vr(Wf(buf,nb),2)}, v{vWc+nb} offset:{kk*4096}")
            A(f"ds_read_b64_tr_b16 {vr(Wf(buf,nb)+2,2)}, v{vWc+nb} offset:{kk*4096+1024}")
    def mfmas(buf):
        for nb in range(2):
            for mb in range(2):
                A(f"v_mfma_f32_32x32x16_bf16 {vr(acc(nb,mb),16)}, {vr(Wf(buf,nb),4)}, {vr(Xf(buf,mb),4)}, {vr(acc(nb,mb),16)}")
    A("s_cmp_lg_u32 s57, 0")
    A(f"s_cbranch_scc1 {name}_inact")
    reads(0, 0)
    A("s_cmp_ge_u32 s55, 8")
    A(f"s_cbranch_scc1 {name}_noissue")
    issue(32)
    A.label(f"{name}_noissue")
    reads(1, 1)
    A("s_waitcnt lgkmcnt(6)")
    mfmas(0)
    reads(2, 0)
    A("s_waitcnt lgkmcnt(6)")
    mfmas(1)
    reads(3, 1)
    A("s_waitcnt lgkmcnt(6)")
    mfmas(0)
    A("s_waitcnt lgkmcnt(0)")
    mfmas(1)
    A(f"s_branch {name}_next")
    A.label(f"{name}_inact")
    A("s_cmp_ge_u32 s55, 8")
    A(f"s_cbranch_scc1 {name}_next")
    issue(32)
    A.label(f"{name}_next")
    A("s_mov_b32 s53, s30")
    A("s_mov_b32 s30, s31")
    A("s_mov_b32 s31, s32")
    A("s_mov_b32 s32, s53")
    A("s_add_u32 s55, s55, 1")
    A("s_cmp_lt_u32 s55, 10")
    A(f"s_cbranch_scc1 {name}_loop")
    A("s_cmp_lg_u32 s57, 0")
    A(f"s_cbranch_scc1 {name}_end")
    A("s_nop 15")
    A(f"v_and_b32 v2, 31, v{vLane}")
    A(f"v_lshrrev_b32 v3, 5, v{vLane}")
    A("s_cmp_eq_u32 s25, 1")
    A(f"s_cbranch_scc1 {name}_epiz")
    A("s_lshl_b32 s53, s23, 3")
    A("s_lshl_b32 s54, s21, 1")
    A("s_add_u32 s53, s53, s54")
    A("s_mul_i32 s53, s53, 4608")
    A("v_mul_u32_u24 v4, 48, v2")
    A("v_add_u32 v4, s53, v4")
    vOff = vE
    vOff2 = vE + 4
    vScale = vE + 8
    vC0 = vE + 12
    vC1 = vE + 16
    vP2 = vE + 20
    vD = vE + 24
    vD2 = vE + 28
    A("s_mul_i32 s58, s24, 3")
    A("s_lshl_b32 s59, s22, 3")
    A(f"s_mov_b32 s60, {QKV_HEAD}")
    A(f"s_mov_b32 s61, {fhex(QSCALE)}")
    A("s_mov_b32 s62, 0x3f803f80")
    A("s_movk_i32 s63, 0x3f80")
    A("s_mov_b32 s64, 0x7fff0000")
    for u in range(4):
        nb, s = u >> 1, u & 1
        A(f"v_add_u32 v5, {4*nb+2*s}, v3")
        A("v_add_u32 v5, s59, v5")
        A("v_mul_u32_u24 v6, 52, v5")
        A("v_lshrrev_b32 v6, 8, v6")
        A("v_mul_u32_u24 v7, 5, v6")
        A("v_sub_u32 v7, v5, v7")
        A("v_add_u32 v6, s58, v6")
        A("v_lshrrev_b32 v8, 4, v6")
        A("v_and_b32 v6, 15, v6")
        A("v_lshlrev_b32 v6, 1, v6")
        A("v_cmp_le_u32 vcc, 3, v7")
        A("s_nop 1")
        A("v_addc_co_u32 v6, vcc, 0, v6, vcc")
        A("v_cmp_le_u32 vcc, 3, v7")
        A("v_subrev_u32 v9, 2, v7")
        A("s_nop 0")
        A("v_cndmask_b32 v9, v7, v9, vcc")
        A("v_mul_lo_u32 v6, v6, s60")
        A("v_lshl_add_u32 v6, v9, 4, v6")
        A("v_cmp_eq_u32 vcc, 0, v8")
        A("v_subrev_u32 v9, 1, v8")
        A("s_nop 0")
        A("v_cndmask_b32 v9, v9, 2, vcc")
        A("v_mul_u32_u24 v9, 0x600, v9")
        A("v_add_u32 v6, v6, v9")
        A("v_add_u32 v6, v6, v4")
        A(f"v_mov_b32 v{vScale+u}, 1.0")
        A(f"v_mov_b32 v9, s61")
        A(f"v_cndmask_b32 v{vScale+u}, v{vScale+u}, v9, vcc")
        A(f"v_mov_b32 v9, s62")
        A(f"v_cndmask_b32 v{vC0+u}, v9, 0, vcc")
        A(f"v_mov_b32 v9, s63")
        A(f"v_cndmask_b32 v{vC1+u}, v9, 0, vcc")
        A("v_cmp_eq_u32 vcc, 15, v5")
        A("v_mov_b32 v9, s64")
        A("s_nop 0")
        A(f"v_cndmask_b32 v{vOff+u}, v6, v9, vcc")
        A(f"v_cmp_eq_u32 s[{66+2*u}:{67+2*u}], 2, v7")
        A(f"v_add_u32 v6, {QKV_HEAD-32}, v6")
        A("s_nop 0")
        A(f"v_cndmask_b32 v{vOff2+u}, v9, v6, s[{66+2*u}:{67+2*u}]")
    for mb in range(2):
        for u in range(4):
            nb, s = u >> 1, u & 1
            a = acc(nb, mb) + 8 * s
            for i in range(8):
                A(f"v_mul_f32 v{a+i}, v{a+i}, v{vScale+u}")
            for i in range(4):
                A(f"v_cvt_pk_bf16_f32 v{vD+i}, v{a+2*i}, v{a+2*i+1}")
            maybe_p2 = (nb, s) in [(0, 1), (1, 1), (1, 0)]
            if maybe_p2:
                A(f"v_mov_b32 v{vD2}, v{vC0+u}")
                A(f"v_mov_b32 v{vD2+1}, v{vC1+u}")
                A(f"v_mov_b32 v{vD2+2}, v{vD+2}")
                A(f"v_mov_b32 v{vD2+3}, v{vD+3}")
                A(f"v_cndmask_b32 v{vD+2}, v{vD+2}, v{vC0+u}, s[{66+2*u}:{67+2*u}]")
                A(f"v_cndmask_b32 v{vD+3}, v{vD+3}, v{vC1+u}, s[{66+2*u}:{67+2*u}]")
            A(f"buffer_store_dwordx4 {vr(vD,4)}, v{vOff+u}, s[16:19], 0 offen offset:{0}" if mb == 0 else
              f"buffer_store_dwordx4 {vr(vD,4)}, v{vOff+u}, s[16:19], s65 offen")
            if maybe_p2:
                A(f"buffer_store_dwordx4 {vr(vD2,4)}, v{vOff2+u}, s[16:19], 0 offen" if mb == 0 else
                  f"buffer_store_dwordx4 {vr(vD2,4)}, v{vOff2+u}, s[16:19], s65 offen")
            A("s_nop 1")
        if mb == 0:
            A("s_movk_i32 s65, 4608")
    A(f"s_branch {name}_end")
    A.label(f"{name}_epiz")
    A("s_lshl_b32 s53, s23, 8")
    A("s_lshl_b32 s54, s21, 6")
    A("s_add_u32 s53, s53, s54")
    A("v_add_u32 v4, s53, v2")
    A("s_movk_i32 s54, 3456")
    A("v_mul_lo_u32 v4, v4, s54")
    A("v_lshl_add_u32 v4, v3, 4, v4")
    A("s_lshl_b32 s53, s24, 8")
    A("s_lshl_b32 s54, s22, 7")
    A("s_add_u32 s53, s53, s54")
    A("v_add_u32 v4, s53, v4")
    vC = vE
    A(f"v_mov_b32 v{vC}, {fhex(GC1)}")
    A(f"v_mov_b32 v{vC+1}, {fhex(GC1)}")
    A(f"v_mov_b32 v{vC+2}, {fhex(GC0)}")
    A(f"v_mov_b32 v{vC+3}, {fhex(GC0)}")
    A(f"v_mov_b32 v{vC+4}, 1.0")
    A(f"v_mov_b32 v{vC+5}, 1.0")
    vT = vE + 8
    vD = vE + 24
    A(f"s_mov_b32 s65, {32*3456}")
    for mb in range(2):
        for nb in range(2):
            a = acc(nb, mb)
            gelu_pk(A, [a + 2 * i for i in range(8)], vT, (vC, vC + 2, vC + 4))
            for s in range(2):
                for i in range(4):
                    A(f"v_cvt_pk_bf16_f32 v{vD+4*s+i}, v{a+8*s+2*i}, v{a+8*s+2*i+1}")
            for s in range(2):
                so = "0" if mb == 0 else "s65"
                A(f"buffer_store_dwordx4 {vr(vD+4*s,4)}, v4, s[16:19], {so} offen offset:{nb*64+s*32}")
            A("s_nop 1")
    A(f"s_branch {name}_end")
    A.label(f"{name}_gate")
    A("s_sub_u32 s50, s48, 4")
    A("s_lshl_b32 s50, s50, 2")
    A("s_sub_u32 s51, s49, 28")
    A("s_add_u32 s50, s50, s51")
    A("s_lshl_b32 s50, s50, 7")
    A("s_lshl_b32 s51, s20, 4")
    A("s_add_u32 s50, s50, s51")
    srd(A, 8, 36, 37, 0, 2048 * 1280)
    srd(A, 12, 44, 45, 0, 1280)
    srd(A, 16, 46, 47, WS_GATE, GATE_SIZE)
    A(f"v_lshrrev_b32 v2, 4, v{vLane}")
    A(f"v_and_b32 v3, 15, v{vLane}")
    A("v_mul_u32_u24 v3, 80, v3")
    A("v_add_u32 v4, s50, v2")
    A("s_movk_i32 s54, 1280")
    A("v_mul_lo_u32 v5, v4, s54")
    A("v_add_u32 v5, v5, v3")
    for i in range(5):
        A(f"buffer_load_dwordx4 {vr(20+4*i,4)}, v3, s[12:15], 0 offen offset:{16*i}")
    for it in range(4):
        for i in range(5):
            A(f"buffer_load_dwordx4 {vr(40+20*it+4*i,4)}, v5, s[8:11], 0 offen offset:{16*i}")
        A(f"v_add_u32 v5, {4*1280}, v5")
    A("s_waitcnt vmcnt(0)")
    for it in range(4):
        A(f"v_mov_b32 v{10+it}, 0")
        for i in range(20):
            A(f"v_dot2_f32_bf16 v{10+it}, v{40+20*it+i}, v{20+i}, v{10+it}")
    A("s_nop 3")
    for sh in (8, 4, 2, 1):
        for it in range(4):
            A(f"v_add_f32_dpp v{10+it}, v{10+it}, v{10+it} row_ror:{sh} row_mask:0xf bank_mask:0xf")
        A("s_nop 1")
    for it in range(4):
        A(f"v_mul_f32 v{10+it}, {fhex(-LOG2E)}, v{10+it}")
    for it in range(4):
        A(f"v_exp_f32 v{10+it}, v{10+it}")
    A("s_nop 0")
    for it in range(4):
        A(f"v_add_f32 v{10+it}, 1.0, v{10+it}")
    for it in range(4):
        A(f"v_rcp_f32 v{10+it}, v{10+it}")
    A("v_lshlrev_b32 v4, 2, v4")
    A(f"v_and_b32 v3, 15, v{vLane}")
    A("v_cmp_eq_u32 vcc, 0, v3")
    A("s_and_saveexec_b64 s[52:53], vcc")
    for it in range(4):
        A(f"buffer_store_dword v{10+it}, v4, s[16:19], 0 offen offset:{16*it}")
    A.label(f"{name}_end")
    A("s_endpgm")
    return NV, 80
```

```python
from asmlib import *
from k1 import *

def gen_attn(A, name="k2_kernel"):
    kernel_begin(A, name)
    SLOT = 24576
    FLAG = 3 * SLOT
    vLane = 1
    vDK = 10
    vK1b, vK2b, vVb = 11, 12, 13
    vK1c, vK2c, vVc = 14, 15, 16
    vK1n, vK2n, vVn = 17, 18, 19
    vQ1 = 20
    vQ2 = 24
    vNM = 26
    vKf = 28
    vVf = 44
    vP = 60
    vS = 68
    vO = 100
    vT = 116
    NV = 128
    def K1(b): return vKf + 8 * b
    def K2(b): return vKf + 8 * b + 4
    def Vf(b, j): return vVf + 8 * b + 4 * j
    def S(b): return vS + 16 * b

    A("s_cmp_ge_u32 s2, 256")
    A(f"s_cbranch_scc1 {name}_end")
    A("s_load_dwordx2 s[46:47], s[0:1], 88")
    A(f"v_and_b32 v{vLane}, 63, v0")
    A("v_lshrrev_b32 v2, 6, v0")
    A("s_and_b32 s48, s2, 7")
    A("v_readfirstlane_b32 s20, v2")
    A("s_lshr_b32 s49, s2, 3")
    A("s_lshl_b32 s21, s48, 2")
    A("s_and_b32 s50, s49, 3")
    A("s_add_u32 s21, s21, s50")
    A("s_lshr_b32 s22, s49, 2")
    A("s_and_b32 s23, s21, 1")
    A("s_waitcnt lgkmcnt(0)")
    srd(A, 8, 46, 47, WS_QKV, QKV_SIZE)
    srd(A, 16, 46, 47, WS_O, O_SIZE)
    A(f"s_mul_i32 s24, s21, {QKV_HEAD}")
    A("s_mul_i32 s25, s20, 4608")
    A("s_add_u32 s25, s25, s24")
    A(f"v_lshlrev_b32 v2, 4, v{vLane}")
    A(f"v_add_u32 v{vDK}, s25, v2")
    A("s_mul_i32 s26, s20, 3072")
    A("s_lshl_b32 s27, s22, 3")
    A("s_add_u32 s27, s27, s20")
    A("s_mul_i32 s28, s27, 4608")
    A("s_add_u32 s28, s28, s24")
    A("s_add_u32 s28, s28, 3072")
    A(f"v_and_b32 v2, 31, v{vLane}")
    A(f"v_lshrrev_b32 v3, 5, v{vLane}")
    A("v_mul_u32_u24 v4, 48, v2")
    A("v_lshl_add_u32 v5, v3, 4, v4")
    A("v_lshl_add_u32 v6, v3, 3, v4")
    A(f"v_add_u32 v{vK2b}, 32, v6")
    A(f"v_mov_b32 v{vK1b}, v5")
    A("v_add_u32 v7, s28, v5")
    A(f"v_add_u32 v8, s28, v{vK2b}")
    A(f"buffer_load_dwordx4 {vr(vQ1,4)}, v7, s[8:11], 0 offen")
    A(f"buffer_load_dwordx2 {vr(vQ2,2)}, v8, s[8:11], 0 offen")
    A(f"v_bfe_u32 v4, v{vLane}, 2, 2")
    A("v_lshl_add_u32 v4, v3, 2, v4")
    A("v_mul_u32_u24 v4, 48, v4")
    A(f"v_and_b32 v5, 3, v{vLane}")
    A(f"v_bfe_u32 v6, v{vLane}, 4, 1")
    A("v_and_b32 v7, 1, v5")
    A("v_lshlrev_b32 v7, 1, v7")
    A("v_lshrrev_b32 v8, 1, v5")
    A("v_or_b32 v7, v7, v8")
    A("v_lshlrev_b32 v7, 3, v7")
    A("s_lshl_b32 s29, s23, 3")
    A("v_add_u32 v7, s29, v7")
    A("s_add_u32 s30, s29, 32")
    A("s_cmp_eq_u32 s23, 0")
    A("s_cselect_b32 s31, 40, 0")
    A("v_mov_b32 v8, s31")
    A("v_mov_b32 v9, s30")
    A("v_cmp_eq_u32 vcc, 0, v5")
    A("s_nop 1")
    A("v_cndmask_b32 v8, v8, v9, vcc")
    A("v_cmp_eq_u32 vcc, 1, v6")
    A("s_nop 1")
    A("v_cndmask_b32 v7, v7, v8, vcc")
    A("v_add_u32 v4, v4, v7")
    A(f"v_add_u32 v{vVb}, 1536, v4")
    A("s_mov_b32 s32, 0")
    A("s_cmp_eq_u32 s23, 0")
    A("s_cselect_b32 s33, -1, 0")
    A("s_cselect_b32 s34, 0, -1")
    A("s_mov_b32 s35, 0")
    A("s_mov_b32 s60, 0")
    A(f"v_mov_b32 v{vNM}, 0")

    def issue(chunk_s, slot_s):
        A(f"s_mul_i32 s36, s{chunk_s}, 36864")
        A(f"s_add_u32 m0, s{slot_s}, s26")
        A("s_nop 0")
        for j in range(3):
            A(f"buffer_load_dwordx4 v{vDK}, s[8:11], s36 offen offset:{j*1024} lds")

    def rdK(buf, aK1, aK2, tile):
        A(f"ds_read_b128 {vr(K1(buf),4)}, v{aK1} offset:{tile*3072}")
        A(f"ds_read_b64 {vr(K2(buf),2)}, v{aK2} offset:{tile*3072}")
    def rdV(buf, aV, tile):
        for j in range(2):
            for rd in range(2):
                A(f"ds_read_b64_tr_b16 {vr(Vf(buf,j)+2*rd,2)}, v{aV} offset:{tile*3072+(16*j+8*rd)*48}")
    def qk(sb, kb, first_only=False):
        A(f"v_mfma_f32_32x32x16_bf16 {vr(S(sb),16)}, {vr(K1(kb),4)}, {vr(vQ1,4)}, 0")
    def qk2(sb, kb):
        A(f"v_mfma_f32_32x32x8_bf16 {vr(S(sb),16)}, {vr(K2(kb),2)}, {vr(vQ2,2)}, {vr(S(sb),16)}")

    def set_specials():
        t = vT
        A(f"v_cvt_pk_bf16_f32 v{t}, v{vNM}, v{vNM}")
        A(f"v_lshlrev_b32 v{t}, 16, v{t}")
        A(f"v_sub_f32 v{t+1}, v{vNM}, v{t}")
        A(f"v_cvt_pk_bf16_f32 v{t+2}, v{t+1}, v{t+1}")
        A(f"v_and_b32 v{t+2}, 0xffff0000, v{t+2}")
        A(f"v_sub_f32 v{t+2}, v{t+1}, v{t+2}")
        A(f"v_cvt_pk_bf16_f32 v{t+3}, v{vNM}, v{t+1}")
        A(f"v_mov_b32 v{t+5}, 0")
        A(f"v_cvt_pk_bf16_f32 v{t+4}, v{t+2}, v{t+5}")
        A(f"v_cndmask_b32 v{vQ2}, v{vQ2}, v{t+3}, s[32:33]")
        A(f"v_cndmask_b32 v{vQ2+1}, v{vQ2+1}, v{t+4}, s[32:33]")
        A(f"v_cndmask_b32 v{vQ1}, v{vQ1}, v{t+3}, s[34:35]")
        A(f"v_cndmask_b32 v{vQ1+1}, v{vQ1+1}, v{t+4}, s[34:35]")
        A("s_nop 1")

    def rowmax(sb, dst):
        s = S(sb)
        A(f"v_max3_f32 v{dst}, v{s}, v{s+1}, v{s+2}")
        for i in range(3, 15, 2):
            A(f"v_max3_f32 v{dst}, v{dst}, v{s+i}, v{s+i+1}")
        A(f"v_max_f32 v{dst}, v{dst}, v{s+15}")
        A(f"v_mov_b32 v{dst+1}, v{dst}")
        A("s_nop 1")
        A(f"v_permlane32_swap_b32 v{dst}, v{dst+1}")
        A("s_nop 1")
        A(f"v_max_f32 v{dst}, v{dst}, v{dst+1}")

    def start_stream():
        A("s_mov_b32 s40, 0")
        A(f"s_mov_b32 s41, {SLOT}")
        A(f"s_mov_b32 s42, {2*SLOT}")
        A("s_mov_b32 s43, 0")
        issue(43, 40)
        A("s_mov_b32 s43, 1")
        issue(43, 41)
        A("s_mov_b32 s43, 2")
        A("s_mov_b32 s44, 0")

    def chunk_top():
        A("s_waitcnt vmcnt(0)")
        A("s_barrier")
        l = A.newlabel(f"{name}_noiss")
        A("s_cmp_ge_u32 s43, 8")
        A(f"s_cbranch_scc1 {l}")
        issue(43, 42)
        A("s_add_u32 s43, s43, 1")
        A.label(l)
        for (b, c, n) in ((vK1b, vK1c, vK1n), (vK2b, vK2c, vK2n), (vVb, vVc, vVn)):
            A(f"v_add_u32 v{c}, s40, v{b}")
            A(f"v_add_u32 v{n}, s41, v{b}")
    def chunk_rotate():
        A("s_mov_b32 s45, s40")
        A("s_mov_b32 s40, s41")
        A("s_mov_b32 s41, s42")
        A("s_mov_b32 s42, s45")
        A("s_add_u32 s44, s44, 1")

    A.label(f"{name}_attempt")
    start_stream()
    A("s_waitcnt vmcnt(0)")
    A("s_barrier")
    for (b, c) in ((vK1b, vK1c), (vK2b, vK2c), (vVb, vVc)):
        A(f"v_mov_b32 v{c}, v{b}")
    rdK(0, vK1c, vK2c, 0)
    rdK(1, vK1c, vK2c, 1)
    rdV(0, vVc, 0)
    for i in range(16):
        A(f"v_mov_b32 v{vO+i}, 0")
    A("s_waitcnt lgkmcnt(0)")
    A("s_cmp_lg_u32 s60, 0")
    A(f"s_cbranch_scc1 {name}_havem")
    qk(0, 0)
    qk2(0, 0)
    A("s_nop 15")
    A("s_nop 3")
    rowmax(0, vT + 8)
    A(f"v_sub_f32 v{vNM}, 0, v{vT+8}")
    set_specials()
    A.label(f"{name}_havem")
    qk(0, 0)
    qk2(0, 0)
    A("s_nop 7")
    A.lines.append(".p2align 6")
    A.label(f"{name}_loop")
    chunk_top()
    for t in range(8):
        cb, nb = t % 2, (t + 1) % 2
        s = S(cb)
        A("s_waitcnt lgkmcnt(0)")
        qk(nb, nb)
        if t + 2 < 8: rdK(cb, vK1c, vK2c, t + 2)
        else: rdK(cb, vK1n, vK2n, t + 2 - 8)
        for i in range(4):
            A(f"v_exp_f32 v{s+i}, v{s+i}")
        qk2(nb, nb)
        if t + 1 < 8: rdV(nb, vVc, t + 1)
        else: rdV(nb, vVn, 0)
        for i in range(4, 8):
            A(f"v_exp_f32 v{s+i}, v{s+i}")
        for i in range(4):
            A(f"v_cvt_pk_bf16_f32 v{vP+i}, v{s+2*i}, v{s+2*i+1}")
        for i in range(8, 10):
            A(f"v_exp_f32 v{s+i}, v{s+i}")
        A(f"v_mfma_f32_32x32x16_bf16 {vr(vO,16)}, {vr(Vf(cb,0),4)}, {vr(vP,4)}, {vr(vO,16)}")
        for i in range(10, 16):
            A(f"v_exp_f32 v{s+i}, v{s+i}")
        for i in range(4, 8):
            A(f"v_cvt_pk_bf16_f32 v{vP+i}, v{s+2*i}, v{s+2*i+1}")
        A("s_nop 1")
        A(f"v_mfma_f32_32x32x16_bf16 {vr(vO,16)}, {vr(Vf(cb,1),4)}, {vr(vP+4,4)}, {vr(vO,16)}")
    chunk_rotate()
    A("s_cmp_lt_u32 s44, 8")
    A(f"s_cbranch_scc1 {name}_loop")
    A("s_waitcnt lgkmcnt(0)")
    A("s_nop 15")
    A(f"v_mov_b32 v{vT}, v{vO+8}")
    A(f"v_mov_b32 v{vT+1}, v{vO+8}")
    A("s_nop 1")
    A(f"v_permlane32_swap_b32 v{vT}, v{vT+1}")
    A("s_nop 1")
    A("s_cmp_lg_u32 s60, 0")
    A(f"s_cbranch_scc1 {name}_fin")
    A(f"v_mov_b32 v{vT+2}, {fhex(2.0**40)}")
    A(f"v_cmp_nlt_f32 vcc, v{vT+1}, v{vT+2}")
    A(f"v_mov_b32 v{vT+3}, {fhex(2.0**-10)}")
    A(f"v_cmp_lt_f32 s[50:51], v{vT+1}, v{vT+3}")
    A("s_nop 1")
    A("s_or_b64 vcc, vcc, s[50:51]")
    A("s_cmp_lg_u64 vcc, 0")
    A("s_cselect_b32 s52, 1, 0")
    A(f"v_mov_b32 v{vT+4}, {FLAG}")
    A(f"v_mov_b32 v{vT+5}, 0")
    A("s_barrier")
    A(f"ds_write_b32 v{vT+4}, v{vT+5}")
    A("s_waitcnt lgkmcnt(0)")
    A("s_barrier")
    A(f"v_mov_b32 v{vT+5}, s52")
    A(f"ds_or_b32 v{vT+4}, v{vT+5}")
    A("s_waitcnt lgkmcnt(0)")
    A("s_barrier")
    A(f"ds_read_b32 v{vT+5}, v{vT+4}")
    A("s_waitcnt lgkmcnt(0)")
    A(f"v_readfirstlane_b32 s52, v{vT+5}")
    A("s_nop 3")
    A("s_cmp_eq_u32 s52, 0")
    A(f"s_cbranch_scc1 {name}_fin")
    A("s_barrier")
    start_stream()
    A(f"v_mov_b32 v{vT+10}, 0xff7fffff")
    A.label(f"{name}_mloop")
    chunk_top()
    for t in range(8):
        rdK(0, vK1c, vK2c, t)
        A("s_waitcnt lgkmcnt(0)")
        qk(0, 0)
        qk2(0, 0)
        A("s_nop 15")
        A("s_nop 3")
        rowmax(0, vT + 8)
        A(f"v_max_f32 v{vT+10}, v{vT+10}, v{vT+8}")
    chunk_rotate()
    A("s_cmp_lt_u32 s44, 8")
    A(f"s_cbranch_scc1 {name}_mloop")
    A(f"v_sub_f32 v{vNM}, v{vNM}, v{vT+10}")
    set_specials()
    A("s_mov_b32 s60, 1")
    A("s_barrier")
    A(f"s_branch {name}_attempt")
    A.label(f"{name}_fin")
    A(f"v_rcp_f32 v{vT+2}, v{vT+1}")
    A("s_nop 0")
    for i in range(12):
        A(f"v_mul_f32 v{vO+i}, v{vO+i}, v{vT+2}")
    for i in range(6):
        A(f"v_cvt_pk_bf16_f32 v{vP+i}, v{vO+2*i}, v{vO+2*i+1}")
    A(f"v_and_b32 v2, 31, v{vLane}")
    A(f"v_lshrrev_b32 v3, 5, v{vLane}")
    A("s_lshl_b32 s52, s27, 5")
    A("v_add_u32 v2, s52, v2")
    A("s_movk_i32 s53, 1280")
    A("v_mul_lo_u32 v2, v2, s53")
    A("s_mul_i32 s53, s21, 40")
    A("v_add_u32 v2, s53, v2")
    A("v_lshl_add_u32 v4, v3, 4, v2")
    A(f"buffer_store_dwordx4 {vr(vP,4)}, v4, s[16:19], 0 offen")
    A("v_cmp_eq_u32 vcc, 0, v3")
    A("s_and_saveexec_b64 s[52:53], vcc")
    A(f"buffer_store_dwordx2 {vr(vP+4,2)}, v2, s[16:19], 0 offen offset:32")
    A.label(f"{name}_end")
    A("s_endpgm")
    return NV, 80
```

```python
from asmlib import *
from k1 import *
from gemm import Gemm

def wave_allreduce_add(A, r, t):
    for sh in (8, 4, 2, 1):
        A("s_nop 1")
        A(f"v_add_f32_dpp v{r}, v{r}, v{r} row_ror:{sh} row_mask:0xf bank_mask:0xf")
    A(f"v_mov_b32 v{t}, v{r}")
    A("s_nop 1")
    A(f"v_permlane16_swap_b32 v{r}, v{t}")
    A("s_nop 1")
    A(f"v_add_f32 v{r}, v{r}, v{t}")
    A(f"v_mov_b32 v{t}, v{r}")
    A("s_nop 1")
    A(f"v_permlane32_swap_b32 v{r}, v{t}")
    A("s_nop 1")
    A(f"v_add_f32 v{r}, v{r}, v{t}")

def ln_rows(A, sRow0, nrows, srdZ, srdOut, vLane, v0, sT, store_flags=""):
    vOffIn = v0; vOffOut = v0 + 1; vT = v0 + 2
    vRaw = (v0 + 6 + 3) // 4 * 4
    vX = vRaw + 8 * nrows
    A(f"s_mul_i32 s{sT}, s{sRow0}, 3456")
    A(f"s_add_u32 s{sT}, s{sT}, 1728")
    A(f"v_lshlrev_b32 v{vT}, 4, v{vLane}")
    A(f"v_add_u32 v{vOffIn}, s{sT}, v{vT}")
    A(f"s_mul_i32 s{sT}, s{sRow0}, 1728")
    A(f"v_add_u32 v{vOffOut}, s{sT}, v{vT}")
    A(f"v_cmp_gt_u32 s[{sT+2}:{sT+3}], 44, v{vLane}")
    for r in range(nrows):
        for i in range(4):
            A(f"v_mov_b32 v{vRaw+8*r+4+i}, 0")
    for r in range(nrows):
        A(f"s_mov_b32 s{sT}, {r*3456}")
        A(f"buffer_load_dwordx4 {vr(vRaw+8*r,4)}, v{vOffIn}, s[{srdZ}:{srdZ+3}], s{sT} offen")
    A(f"s_mov_b64 s[{sT+4}:{sT+5}], exec")
    A(f"s_mov_b64 exec, s[{sT+2}:{sT+3}]")
    for r in range(nrows):
        A(f"s_mov_b32 s{sT}, {r*3456}")
        A(f"buffer_load_dwordx4 {vr(vRaw+8*r+4,4)}, v{vOffIn}, s[{srdZ}:{srdZ+3}], s{sT} offen offset:1024")
    A(f"s_mov_b64 exec, s[{sT+4}:{sT+5}]")
    A("s_waitcnt vmcnt(0)")
    for r in range(nrows):
        x = vX + 16 * r
        for i in range(8):
            A(f"v_lshlrev_b32 v{x+2*i}, 16, v{vRaw+8*r+i}")
            A(f"v_and_b32 v{x+2*i+1}, 0xffff0000, v{vRaw+8*r+i}")
    for r in range(nrows):
        x = vX + 16 * r; s = vRaw + 8 * r
        A(f"v_add_f32 v{s}, v{x}, v{x+1}")
        for i in range(2, 16):
            A(f"v_add_f32 v{s}, v{s}, v{x+i}")
        wave_allreduce_add(A, s, s + 1)
        A(f"v_mul_f32 v{s}, {fhex(1.0/864)}, v{s}")
        for i in range(16):
            A(f"v_sub_f32 v{x+i}, v{x+i}, v{s}")
        for i in range(8, 16):
            A(f"v_cndmask_b32 v{x+i}, 0, v{x+i}, s[{sT+2}:{sT+3}]")
        A(f"v_mul_f32 v{s}, v{x}, v{x}")
        for i in range(1, 16):
            A(f"v_fmac_f32 v{s}, v{x+i}, v{x+i}")
        wave_allreduce_add(A, s, s + 1)
        A(f"v_mov_b32 v{s+1}, {fhex(1e-5)}")
        A(f"v_fmac_f32 v{s+1}, {fhex(1.0/864)}, v{s}")
        A(f"v_rsq_f32 v{s+1}, v{s+1}")
        A("s_nop 0")
        for i in range(16):
            A(f"v_mul_f32 v{x+i}, v{x+i}, v{s+1}")
        for i in range(8):
            A(f"v_cvt_pk_bf16_f32 v{s+i}, v{x+2*i}, v{x+2*i+1}")
    for r in range(nrows):
        A(f"s_mov_b32 s{sT}, {r*1728}")
        A(f"buffer_store_dwordx4 {vr(vRaw+8*r,4)}, v{vOffOut}, s[{srdOut}:{srdOut+3}], s{sT} offen {store_flags}")
    A(f"s_mov_b64 exec, s[{sT+2}:{sT+3}]")
    for r in range(nrows):
        A(f"s_mov_b32 s{sT}, {r*1728}")
        A(f"buffer_store_dwordx4 {vr(vRaw+8*r+4,4)}, v{vOffOut}, s[{srdOut}:{srdOut+3}], s{sT} offen offset:1024 {store_flags}")
    A(f"s_mov_b64 exec, s[{sT+4}:{sT+5}]")
    return vX + 16 * nrows

def gen_ln(A, name="k3_kernel"):
    kernel_begin(A, name)
    A("s_cmp_ge_u32 s2, 256")
    A(f"s_cbranch_scc1 {name}_end")
    A("s_load_dwordx2 s[46:47], s[0:1], 88")
    A("v_and_b32 v1, 63, v0")
    A("v_lshrrev_b32 v2, 6, v0")
    A("s_lshl_b32 s21, s2, 3")
    A("v_readfirstlane_b32 s20, v2")
    A("s_waitcnt lgkmcnt(0)")
    A("s_lshl_b32 s22, s20, 1")
    A("s_add_u32 s21, s21, s22")
    srd(A, 8, 46, 47, WS_Z, Z_SIZE)
    srd(A, 16, 46, 47, WS_Z2N, Z2N_SIZE)
    nv = ln_rows(A, 21, 2, 8, 16, 1, 2, 24)
    A.label(f"{name}_end")
    A("s_endpgm")
    return nv, 48

def gemm_loop(A, G, name, nsteps, srdA, srdB, acc, stepA, stepB, started=False):
    D = G.nslots - 1
    def adv():
        A(f"s_add_u32 s{G.sOffA}, s{G.sOffA}, {stepA}")
        A(f"s_add_u32 s{G.sOffB}, s{G.sOffB}, {stepB}")
    for i in range(min(D, nsteps)):
        G.issue(i, srdA, srdB); adv()
    sCnt = G.send
    nsteady = nsteps - D
    if nsteady > 0:
        A(f"s_mov_b32 s{sCnt}, {nsteady}")
        A.lines.append(".p2align 6")
        A.label(f"{name}_loop")
        A(f"s_waitcnt vmcnt({(D-1)*G.ndma})")
        A("s_barrier")
        G.cur_addrs()
        def mid():
            G.issue(D, srdA, srdB); adv()
        G.compute_step(acc, mid)
        G.rotate()
        A(f"s_sub_u32 s{sCnt}, s{sCnt}, 1")
        A(f"s_cmp_lg_u32 s{sCnt}, 0")
        A(f"s_cbranch_scc1 {name}_loop")
    for j in range(min(D, nsteps)):
        A(f"s_waitcnt vmcnt({(min(D,nsteps)-1-j)*G.ndma})")
        A("s_barrier")
        G.cur_addrs()
        G.compute_step(acc)
        G.rotate()

def gen_spatial(A, name="k4_kernel"):
    kernel_begin(A, name)
    A("s_cmp_ge_u32 s2, 256")
    A(f"s_cbranch_scc1 {name}_end")
    A("s_load_dwordx4 s[40:43], s[0:1], 40")
    A("s_load_dwordx2 s[46:47], s[0:1], 88")
    A("v_and_b32 v1, 63, v0")
    A("v_lshrrev_b32 v2, 6, v0")
    A("s_and_b32 s48, s2, 7")
    A("v_readfirstlane_b32 s20, v2")
    A("s_lshr_b32 s49, s2, 3")
    A("s_lshr_b32 s21, s20, 1")
    A("s_and_b32 s22, s20, 1")
    A("s_lshl_b32 s23, s48, 2")
    A("s_and_b32 s50, s49, 3")
    A("s_add_u32 s23, s23, s50")
    A("s_lshr_b32 s24, s49, 2")
    A("s_lshl_b32 s25, s24, 2")
    A("s_mul_i32 s26, s24, 3")
    A("s_add_u32 s26, s26, 3")
    A("s_cmp_lt_u32 s24, 3")
    A("s_cselect_b32 s25, s25, s26")
    A("s_cselect_b32 s26, 4, 3")
    A("s_waitcnt lgkmcnt(0)")
    srd(A, 8, 40, 41, 0, 2048 * 4096)
    srd(A, 12, 46, 47, WS_Z2N, Z2N_SIZE)
    G = Gemm(A, 4, 64, 2, 2, 1, 2, 4, 0, 10, 60, 20, 21, 22, 1)
    A("s_lshl_b32 s27, s23, 6")
    A("s_lshl_b32 s28, s25, 6")
    G.setup_dma(27, 4096, 28, 1728)
    G.init_slots()
    A(f"s_mov_b32 s{G.sOffA}, 0")
    A(f"s_mov_b32 s{G.sOffB}, 0")
    G.setup_reads()
    vAcc = (G.vend + 3) // 4 * 4
    def acc(nb, mb): return vAcc + 16 * nb
    for i in range(32):
        A(f"v_mov_b32 v{vAcc+i}, 0")
    gemm_loop(A, G, name, 32, 8, 12, acc, 128, 64 * 1728)
    vE = vAcc + 32
    srd(A, 8, 46, 47, WS_Z, Z_SIZE)
    srd(A, 12, 42, 43, 0, 4096)
    srd(A, 16, 46, 47, WS_U, U_SIZE)
    A("v_and_b32 v2, 31, v1")
    A("v_lshrrev_b32 v3, 5, v1")
    A("s_lshl_b32 s29, s21, 5")
    A("s_add_u32 s29, s29, s27")
    A("v_add_u32 v2, s29, v2")
    A("v_lshlrev_b32 v4, 1, v2")
    A(f"buffer_load_ushort v{vE}, v4, s[12:15], 0 offen")
    A("s_lshl_b32 s30, s22, 1")
    A("s_add_u32 s31, s30, s25")
    A("s_lshl_b32 s31, s31, 6")
    A("s_movk_i32 s32, 3456")
    A("v_mul_lo_u32 v5, v2, s32")
    A("v_lshl_add_u32 v5, v3, 4, v5")
    A("v_add_u32 v5, s31, v5")
    A("s_movk_i32 s32, 1728")
    A("v_mul_lo_u32 v6, v2, s32")
    A("v_lshl_add_u32 v6, v3, 4, v6")
    A("v_add_u32 v6, s31, v6")
    for nb in range(2):
        for s in range(2):
            A(f"buffer_load_dwordx4 {vr(vE+4+8*nb+4*s,4)}, v5, s[8:11], 0 offen offset:{nb*64+s*32}")
    A("s_waitcnt vmcnt(0)")
    A(f"v_lshlrev_b32 v{vE}, 16, v{vE}")
    for nb in range(2):
        lab = A.newlabel(f"{name}_skip")
        A(f"s_add_u32 s33, s30, {nb}")
        A("s_cmp_ge_u32 s33, s26")
        A(f"s_cbranch_scc1 {lab}")
        for s in range(2):
            a = acc(nb, 0) + 8 * s
            z = vE + 4 + 8 * nb + 4 * s
            t = vE + 20
            for i in range(4):
                A(f"v_lshlrev_b32 v{t+2*i}, 16, v{z+i}")
                A(f"v_and_b32 v{t+2*i+1}, 0xffff0000, v{z+i}")
            for i in range(8):
                A(f"v_add_f32 v{a+i}, v{a+i}, v{vE}")
                A(f"v_mul_f32 v{a+i}, v{a+i}, v{t+i}")
            for i in range(4):
                A(f"v_cvt_pk_bf16_f32 v{z+i}, v{a+2*i}, v{a+2*i+1}")
            A(f"buffer_store_dwordx4 {vr(z,4)}, v6, s[16:19], 0 offen offset:{nb*64+s*32}")
        A.label(lab)
    A.label(f"{name}_end")
    A("s_endpgm")
    return vE + 32, 90

def gen_final(A, name="k5_kernel"):
    kernel_begin(A, name)
    A("s_cmp_ge_u32 s2, 160")
    A(f"s_cbranch_scc1 {name}_end")
    A("s_load_dwordx2 s[40:41], s[0:1], 16")
    A("s_load_dwordx2 s[42:43], s[0:1], 56")
    A("s_load_dwordx2 s[44:45], s[0:1], 72")
    A("s_load_dwordx2 s[46:47], s[0:1], 88")
    A("v_and_b32 v1, 63, v0")
    A("v_lshrrev_b32 v2, 6, v0")
    A("s_and_b32 s48, s2, 7")
    A("v_readfirstlane_b32 s20, v2")
    A("s_lshr_b32 s49, s2, 3")
    A("s_lshr_b32 s21, s20, 1")
    A("s_and_b32 s22, s20, 1")
    A("s_lshl_b32 s23, s48, 2")
    A("s_and_b32 s50, s49, 3")
    A("s_add_u32 s23, s23, s50")
    A("s_lshr_b32 s24, s49, 2")
    A("s_waitcnt lgkmcnt(0)")
    G = Gemm(A, 4, 64, 2, 2, 1, 2, 4, 0, 10, 60, 20, 21, 22, 1)
    A("s_lshl_b32 s27, s23, 6")
    A("s_lshl_b32 s28, s24, 8")
    vAcc = (G.vend + 3) // 4 * 4
    def accA(nb, mb): return vAcc + 16 * nb
    def accB(nb, mb): return vAcc + 32 + 16 * nb
    for i in range(64):
        A(f"v_mov_b32 v{vAcc+i}, 0")
    G.setup_reads()
    srd(A, 8, 46, 47, WS_O, O_SIZE)
    srd(A, 12, 40, 41, 0, 640 * 1280)
    G.setup_dma(27, 1280, 28, 1280)
    G.init_slots()
    A(f"s_mov_b32 s{G.sOffA}, 0")
    A(f"s_mov_b32 s{G.sOffB}, 0")
    gemm_loop(A, G, name + "_a", 10, 8, 12, accA, 128, 64 * 1280)
    A("s_barrier")
    srd(A, 8, 46, 47, WS_U, U_SIZE)
    srd(A, 12, 42, 43, 0, 864 * 1280)
    G.setup_dma(27, 1728, 28, 1280)
    A(f"s_mov_b32 s{G.sOffA}, 0")
    A(f"s_mov_b32 s{G.sOffB}, 0")
    gemm_loop(A, G, name + "_b", 14, 8, 12, accB, 128, 64 * 1280)
    vE = vAcc + 64
    srd(A, 8, 46, 47, WS_GATE, GATE_SIZE)
    srd(A, 16, 44, 45, 0, 2048 * 1280)
    A("v_and_b32 v2, 31, v1")
    A("v_lshrrev_b32 v3, 5, v1")
    A("s_lshl_b32 s29, s21, 5")
    A("s_add_u32 s29, s29, s27")
    A("v_add_u32 v2, s29, v2")
    A("v_lshlrev_b32 v4, 2, v2")
    A(f"buffer_load_dword v{vE}, v4, s[8:11], 0 offen")
    A("s_lshl_b32 s31, s22, 7")
    A("s_add_u32 s31, s31, s28")
    A("s_movk_i32 s32, 1280")
    A("v_mul_lo_u32 v6, v2, s32")
    A("v_lshl_add_u32 v6, v3, 4, v6")
    A("v_add_u32 v6, s31, v6")
    A("s_waitcnt vmcnt(0)")
    A(f"v_sub_f32 v{vE+1}, 1.0, v{vE}")
    A("s_nop 7")
    for nb in range(2):
        for s in range(2):
            a = accA(nb, 0) + 8 * s; b = accB(nb, 0) + 8 * s
            for i in range(8):
                A(f"v_mul_f32 v{a+i}, v{a+i}, v{vE}")
                A(f"v_fmac_f32 v{a+i}, v{b+i}, v{vE+1}")
            d = vE + 4 + 4 * (2 * nb + s)
            for i in range(4):
                A(f"v_cvt_pk_bf16_f32 v{d+i}, v{a+2*i}, v{a+2*i+1}")
            A(f"buffer_store_dwordx4 {vr(d,4)}, v6, s[16:19], 0 offen offset:{nb*64+s*32}")
    A.label(f"{name}_end")
    A("s_endpgm")
    return vE + 24, 90
```

```python
import sys
sys.path.insert(0, "dev")
from asmlib import *
import k1, k2, k3

HEADER = """; gated_mix__softmax_full_mha__mixer_gmlp__prompt : hand-written gfx950 kernels (generated by the author's own scripts)
"""

def build(kernels):
    A = Asm()
    head = HEADER
    for name, fn, grid, block, lds in kernels:
        head += f"; @launch kernel={name} grid=({grid},1,1) block=({block},1,1) lds={lds}\n"
    A.lines.append('.amdgcn_target "amdgcn-amd-amdhsa--gfx950"')
    descs = []
    done = set()
    for name, fn, grid, block, lds in kernels:
        if name in done: continue
        done.add(name)
        nv, ns = fn(A, name)
        descs.append((name, nv, ns))
    for name, nv, ns in descs:
        kernel_desc(A, name, nv, ns)
    return head + A.text()

if __name__ == "__main__":
    out = sys.argv[1]
    ks = [("k1_kernel", k1.gen_k1, 256, 512, 147456), ("k2_kernel", k2.gen_attn, 256, 512, 3*24576+64),
      ("k3_kernel", k3.gen_ln, 256, 256, 0), ("k4_kernel", k3.gen_spatial, 256, 256, 4*24576), ("k5_kernel", k3.gen_final, 160, 256, 4*24576)]
    open(out, "w").write(build(ks))
```

```python
class Asm:
    def __init__(self):
        self.lines = []
        self.uid = 0
    def __call__(self, s):
        for ln in s.split("\n"):
            self.lines.append("    " + ln.strip() if ln.strip() and not ln.strip().endswith(":") else ln.strip())
    def label(self, name):
        self.lines.append(name + ":")
    def newlabel(self, base):
        self.uid += 1
        return f"{base}_{self.uid}"
    def comment(self, s):
        self.lines.append("    ; " + s)
    def text(self):
        return "\n".join(self.lines) + "\n"

def vr(a, n=1):
    return f"v{a}" if n == 1 else f"v[{a}:{a+n-1}]"
def sr(a, n=1):
    return f"s{a}" if n == 1 else f"s[{a}:{a+n-1}]"

def kernel_begin(A, name):
    A(".text")
    A(f".globl {name}")
    A.lines.append(".p2align 8")
    A(f".type {name},@function")
    A.label(name)

def kernel_desc(A, name, nvgpr, nsgpr, accum=None):
    if accum is None:
        accum = (nvgpr + 3) // 4 * 4
    A.lines.append('.section .rodata,"a"')
    A.lines.append(".p2align 6")
    A.lines.append(f".amdhsa_kernel {name}")
    A.lines.append(f"  .amdhsa_next_free_vgpr {nvgpr}")
    A.lines.append(f"  .amdhsa_next_free_sgpr {nsgpr}")
    A.lines.append(f"  .amdhsa_accum_offset {accum}")
    A.lines.append("  .amdhsa_group_segment_fixed_size 0")
    A.lines.append("  .amdhsa_kernarg_size 96")
    A.lines.append("  .amdhsa_user_sgpr_count 2")
    A.lines.append("  .amdhsa_user_sgpr_kernarg_segment_ptr 1")
    A.lines.append("  .amdhsa_system_sgpr_workgroup_id_x 1")
    A.lines.append(".end_amdhsa_kernel")

def srd(A, d, base_lo, base_hi, off, size):
    if off:
        A(f"s_add_u32 s{d}, s{base_lo}, {off}")
        A(f"s_addc_u32 s{d+1}, s{base_hi}, 0")
    else:
        A(f"s_mov_b32 s{d}, s{base_lo}")
        A(f"s_mov_b32 s{d+1}, s{base_hi}")
    A(f"s_mov_b32 s{d+2}, {size}")
    A(f"s_mov_b32 s{d+3}, 0x20000")

import struct
def f32bits(x):
    return struct.unpack("<I", struct.pack("<f", x))[0]
def fhex(x):
    return f"0x{f32bits(x):08x}"

INSTR = False
WS_TS = 0x3000000
def ts_begin(A):
    if not INSTR: return
    A("s_memrealtime s[92:93]")
    A("s_memtime s[94:95]")
def ts_mark(A, k, name, kidx, sws_lo=46, sws_hi=47, va=126, vb=127):
    if not INSTR: return
    lab = A.newlabel("ts")
    A("s_memrealtime s[86:87]")
    A("s_memtime s[88:89]")
    A(f"v_and_b32 v{va}, 63, v0")
    A(f"v_cmp_eq_u32 vcc, 0, v{va}")
    A("s_waitcnt lgkmcnt(0)")
    A("s_and_saveexec_b64 s[90:91], vcc")
    A(f"s_cbranch_execz {lab}")
    A(f"s_add_u32 s96, s{sws_lo}, {WS_TS + kidx*0x40000}")
    A(f"s_addc_u32 s97, s{sws_hi}, 0")
    A("s_mov_b32 s98, 0x40000")
    A("s_mov_b32 s99, 0x20000")
    A("s_lshl_b32 s100, s2, 10")
    A(f"s_add_u32 s100, s100, {k*16}")
    A(f"v_lshrrev_b32 v{va}, 6, v0")
    A(f"v_lshlrev_b32 v{va}, 6, v{va}")
    A(f"v_add_u32 v{va}, s100, v{va}")
    A(f"v_mov_b32 v{vb}, s92")
    A(f"buffer_store_dword v{vb}, v{va}, s[96:99], 0 offen")
    A(f"v_mov_b32 v{vb}, s86")
    A(f"buffer_store_dword v{vb}, v{va}, s[96:99], 0 offen offset:4")
    A(f"v_mov_b32 v{vb}, s94")
    A(f"buffer_store_dword v{vb}, v{va}, s[96:99], 0 offen offset:8")
    A(f"v_mov_b32 v{vb}, s88")
    A(f"buffer_store_dword v{vb}, v{va}, s[96:99], 0 offen offset:12")
    A.label(lab)
    A("s_mov_b64 exec, s[90:91]")
```

```python
from asmlib import *

class Gemm:
    def __init__(self, A, nw, BM, WM, WN, TM, TN, nslots, lds_base, v0, s0, sW, sWM, sWN, vLane):
        self.A = A; self.nw = nw; self.BM = BM; self.WM = WM; self.WN = WN; self.TM = TM; self.TN = TN
        self.nslots = nslots; self.lds_base = lds_base
        self.a_per = BM // 8 // nw
        self.b_per = 16 // nw
        assert self.a_per * 8 * nw == BM and self.b_per * nw == 16
        self.ABYTES = BM * 128
        self.SLOT = self.ABYTES + 16384
        self.sW, self.sWM, self.sWN, self.vLane = sW, sWM, sWN, vLane
        v = v0
        self.vDA = v; v += self.a_per
        self.vDB = v; v += self.b_per
        self.vXb = v; v += 4
        self.vWb = v; v += TN
        self.vXc = v; v += 4
        self.vWc = v; v += TN
        v = (v + 3) // 4 * 4
        self.fsz = 4 * (TM + TN)
        self.vF = v; v += 2 * self.fsz
        self.vend = v
        s = s0
        self.sM0A = s; s += 1
        self.sM0B = s; s += 1
        self.sSlot = s; s += nslots
        self.sOffA = s; s += 1
        self.sOffB = s; s += 1
        self.sT = s; s += 2
        self.send = s
    def Xf(self, buf, mb): return self.vF + buf * self.fsz + mb * 4
    def Wf(self, buf, nb): return self.vF + buf * self.fsz + 4 * self.TM + nb * 4

    def setup_dma(self, sRowBase, pitchA, sColBytes, pitchB, t0=2):
        A = self.A; L = self.vLane; sT = self.sT
        def mul(dst, src, pitch):
            if isinstance(pitch, int):
                A(f"s_mov_b32 s{sT+1}, {pitch}")
                A(f"v_mul_lo_u32 v{dst}, v{src}, s{sT+1}")
            else:
                A(f"v_mul_lo_u32 v{dst}, v{src}, s{pitch[1]}")
        A(f"v_lshrrev_b32 v{t0}, 3, v{L}")
        A(f"v_and_b32 v{t0+1}, 7, v{L}")
        A(f"s_mul_i32 s{sT}, s{self.sW}, {8*self.a_per}")
        A(f"s_add_u32 s{sT}, s{sT}, s{sRowBase}")
        A(f"v_add_u32 v{t0+2}, s{sT}, v{t0}")
        mul(t0 + 2, t0 + 2, pitchA)
        A(f"v_lshrrev_b32 v{t0+3}, 1, v{t0}")
        for j in range(self.a_per):
            if self.a_per % 2 == 0:
                par = j & 1
                if par:
                    A(f"v_or_b32 v{t0+4}, 4, v{t0+3}")
                    A(f"v_xor_b32 v{t0+4}, v{t0+4}, v{t0+1}")
                else:
                    A(f"v_xor_b32 v{t0+4}, v{t0+3}, v{t0+1}")
            else:
                A(f"s_mul_i32 s{sT}, s{self.sW}, {self.a_per}")
                A(f"s_add_u32 s{sT}, s{sT}, {j}")
                A(f"s_and_b32 s{sT}, s{sT}, 1")
                A(f"s_lshl_b32 s{sT}, s{sT}, 2")
                A(f"v_or_b32 v{t0+4}, s{sT}, v{t0+3}")
                A(f"v_xor_b32 v{t0+4}, v{t0+4}, v{t0+1}")
            A(f"v_lshl_add_u32 v{t0+4}, v{t0+4}, 4, v{t0+2}")
            if isinstance(pitchA, int):
                A(f"v_add_u32 v{self.vDA+j}, {j*(8*pitchA-1024)}, v{t0+4}")
            else:
                raise NotImplementedError
        A(f"v_lshrrev_b32 v{t0}, 4, v{L}")
        A(f"v_and_b32 v{t0+1}, 15, v{L}")
        A(f"v_lshlrev_b32 v{t0+3}, 2, v{t0}")
        A(f"v_xor_b32 v{t0+1}, v{t0+1}, v{t0+3}")
        A(f"s_mul_i32 s{sT}, s{self.sW}, {4*self.b_per}")
        A(f"v_add_u32 v{t0+2}, s{sT}, v{t0}")
        mul(t0 + 2, t0 + 2, pitchB)
        A(f"v_lshl_add_u32 v{t0+2}, v{t0+1}, 4, v{t0+2}")
        A(f"v_add_u32 v{self.vDB}, s{sColBytes}, v{t0+2}")
        for j in range(1, self.b_per):
            if isinstance(pitchB, int):
                A(f"v_add_u32 v{self.vDB+j}, {j*(4*pitchB-1024)}, v{self.vDB}")
            else:
                A(f"s_lshl_b32 s{sT}, s{pitchB[1]}, 2")
                A(f"s_sub_u32 s{sT}, s{sT}, 1024")
                A(f"s_mul_i32 s{sT}, s{sT}, {j}")
                A(f"v_add_u32 v{self.vDB+j}, s{sT}, v{self.vDB}")
        A(f"s_mul_i32 s{self.sM0A}, s{self.sW}, {self.a_per*1024}")
        A(f"s_mul_i32 s{self.sM0B}, s{self.sW}, {self.b_per*1024}")
        A(f"s_add_u32 s{self.sM0B}, s{self.sM0B}, {self.ABYTES}")

    def init_slots(self):
        for i in range(self.nslots):
            self.A(f"s_mov_b32 s{self.sSlot+i}, {self.lds_base + i*self.SLOT}")
    def rotate(self):
        A = self.A; n = self.nslots
        A(f"s_mov_b32 s{self.sT}, s{self.sSlot}")
        for i in range(n - 1):
            A(f"s_mov_b32 s{self.sSlot+i}, s{self.sSlot+i+1}")
        A(f"s_mov_b32 s{self.sSlot+n-1}, s{self.sT}")

    def issue(self, slot_idx, srdA, srdB, do_a=True, do_b=True):
        A = self.A
        if do_a:
            A(f"s_add_u32 m0, s{self.sSlot+slot_idx}, s{self.sM0A}")
            A("s_nop 0")
            for j in range(self.a_per):
                A(f"buffer_load_dwordx4 v{self.vDA+j}, s[{srdA}:{srdA+3}], s{self.sOffA} offen offset:{j*1024} lds")
        if do_b:
            A(f"s_add_u32 m0, s{self.sSlot+slot_idx}, s{self.sM0B}")
            A("s_nop 0")
            for j in range(self.b_per):
                A(f"buffer_load_dwordx4 v{self.vDB+j}, s[{srdB}:{srdB+3}], s{self.sOffB} offen offset:{j*1024} lds")
    @property
    def ndma(self): return self.a_per + self.b_per

    def setup_reads(self, t0=2):
        A = self.A; L = self.vLane; sT = self.sT
        A(f"v_and_b32 v{t0}, 31, v{L}")
        A(f"s_mul_i32 s{sT}, s{self.sWM}, {32*self.TM}")
        A(f"v_add_u32 v{t0}, s{sT}, v{t0}")
        A(f"v_lshlrev_b32 v{t0}, 7, v{t0}")
        A(f"v_lshrrev_b32 v{t0+1}, 5, v{L}")
        A(f"v_bfe_u32 v{t0+2}, v{L}, 1, 3")
        for kk in range(4):
            A(f"v_or_b32 v{t0+3}, {2*kk}, v{t0+1}")
            A(f"v_xor_b32 v{t0+3}, v{t0+3}, v{t0+2}")
            A(f"v_lshl_add_u32 v{self.vXb+kk}, v{t0+3}, 4, v{t0}")
        A(f"v_lshrrev_b32 v{t0}, 5, v{L}")
        A(f"v_bfe_u32 v{t0+1}, v{L}, 2, 2")
        A(f"v_lshl_add_u32 v{t0+2}, v{t0}, 3, v{t0+1}")
        A(f"v_lshlrev_b32 v{t0+2}, 8, v{t0+2}")
        A(f"v_bfe_u32 v{t0+3}, v{L}, 4, 1")
        A(f"v_lshl_add_u32 v{t0+2}, v{t0+3}, 5, v{t0+2}")
        A(f"v_and_b32 v{t0+3}, 1, v{L}")
        A(f"v_lshl_add_u32 v{t0+2}, v{t0+3}, 4, v{t0+2}")
        A(f"v_bfe_u32 v{t0+3}, v{L}, 1, 1")
        A(f"v_lshl_add_u32 v{t0+2}, v{t0+3}, 3, v{t0+2}")
        A(f"v_add_u32 v{t0+2}, {self.ABYTES}, v{t0+2}")
        A(f"s_mul_i32 s{sT}, s{self.sWN}, {self.TN}")
        for nb in range(self.TN):
            A(f"s_add_u32 s{sT+1}, s{sT}, {nb}")
            A(f"v_xor_b32 v{t0+3}, s{sT+1}, v{t0+1}")
            A(f"v_lshl_add_u32 v{self.vWb+nb}, v{t0+3}, 6, v{t0+2}")

    def cur_addrs(self):
        A = self.A
        for kk in range(4):
            A(f"v_add_u32 v{self.vXc+kk}, s{self.sSlot}, v{self.vXb+kk}")
        for nb in range(self.TN):
            A(f"v_add_u32 v{self.vWc+nb}, s{self.sSlot}, v{self.vWb+nb}")
    def reads(self, kk, buf):
        A = self.A
        for mb in range(self.TM):
            A(f"ds_read_b128 {vr(self.Xf(buf,mb),4)}, v{self.vXc+kk} offset:{mb*4096}")
        for nb in range(self.TN):
            A(f"ds_read_b64_tr_b16 {vr(self.Wf(buf,nb),2)}, v{self.vWc+nb} offset:{kk*4096}")
            A(f"ds_read_b64_tr_b16 {vr(self.Wf(buf,nb)+2,2)}, v{self.vWc+nb} offset:{kk*4096+1024}")
    @property
    def nreads(self): return self.TM + 2 * self.TN
    def mfmas(self, buf, acc):
        for nb in range(self.TN):
            for mb in range(self.TM):
                self.A(f"v_mfma_f32_32x32x16_bf16 {vr(acc(nb,mb),16)}, {vr(self.Wf(buf,nb),4)}, {vr(self.Xf(buf,mb),4)}, {vr(acc(nb,mb),16)}")
    def compute_step(self, acc, mid=None):
        A = self.A; n = self.nreads
        self.reads(0, 0)
        if mid: mid()
        self.reads(1, 1)
        A(f"s_waitcnt lgkmcnt({n})")
        self.mfmas(0, acc)
        self.reads(2, 0)
        A(f"s_waitcnt lgkmcnt({n})")
        self.mfmas(1, acc)
        self.reads(3, 1)
        A(f"s_waitcnt lgkmcnt({n})")
        self.mfmas(0, acc)
        A("s_waitcnt lgkmcnt(0)")
        self.mfmas(1, acc)

    def setup_dma_a(self, dst, sRowBase, pitchA, sW=None, t0=2):
        A = self.A; L = self.vLane; sT = self.sT
        sW = self.sW if sW is None else sW
        A(f"v_lshrrev_b32 v{t0}, 3, v{L}")
        A(f"v_and_b32 v{t0+1}, 7, v{L}")
        A(f"s_mul_i32 s{sT}, s{sW}, {8*self.a_per}")
        A(f"s_add_u32 s{sT}, s{sT}, s{sRowBase}")
        A(f"v_add_u32 v{t0+2}, s{sT}, v{t0}")
        A(f"s_mov_b32 s{sT+1}, {pitchA}")
        A(f"v_mul_lo_u32 v{t0+2}, v{t0+2}, s{sT+1}")
        A(f"v_lshrrev_b32 v{t0+3}, 1, v{t0}")
        assert self.a_per % 2 == 0
        for j in range(self.a_per):
            if j & 1:
                A(f"v_or_b32 v{t0+4}, 4, v{t0+3}")
                A(f"v_xor_b32 v{t0+4}, v{t0+4}, v{t0+1}")
            else:
                A(f"v_xor_b32 v{t0+4}, v{t0+3}, v{t0+1}")
            A(f"v_lshl_add_u32 v{t0+4}, v{t0+4}, 4, v{t0+2}")
            A(f"v_add_u32 v{dst+j}, {j*(8*pitchA-1024)}, v{t0+4}")
        A(f"s_mul_i32 s{self.sM0A}, s{sW}, {self.a_per*1024}")
    def setup_dma_b(self, dst, sColBytes, pitchB, sW=None, t0=2):
        A = self.A; L = self.vLane; sT = self.sT
        sW = self.sW if sW is None else sW
        A(f"v_lshrrev_b32 v{t0}, 4, v{L}")
        A(f"v_and_b32 v{t0+1}, 15, v{L}")
        A(f"v_lshlrev_b32 v{t0+3}, 2, v{t0}")
        A(f"v_xor_b32 v{t0+1}, v{t0+1}, v{t0+3}")
        A(f"s_mul_i32 s{sT}, s{sW}, {4*self.b_per}")
        A(f"v_add_u32 v{t0+2}, s{sT}, v{t0}")
        A(f"s_mov_b32 s{sT+1}, {pitchB}")
        A(f"v_mul_lo_u32 v{t0+2}, v{t0+2}, s{sT+1}")
        A(f"v_lshl_add_u32 v{t0+2}, v{t0+1}, 4, v{t0+2}")
        A(f"v_add_u32 v{dst}, s{sColBytes}, v{t0+2}")
        for j in range(1, self.b_per):
            A(f"v_add_u32 v{dst+j}, {j*(4*pitchB-1024)}, v{dst}")
        A(f"s_mul_i32 s{self.sM0B}, s{sW}, {self.b_per*1024}")
        A(f"s_add_u32 s{self.sM0B}, s{self.sM0B}, {self.ABYTES}")
    def issue_a(self, slot_idx, srd_, vbase, sOff):
        A = self.A
        A(f"s_add_u32 m0, s{self.sSlot+slot_idx}, s{self.sM0A}")
        A("s_nop 0")
        for j in range(self.a_per):
            A(f"buffer_load_dwordx4 v{vbase+j}, s[{srd_}:{srd_+3}], s{sOff} offen offset:{j*1024} lds")
    def issue_b(self, slot_idx, srd_, vbase, sOff):
        A = self.A
        A(f"s_add_u32 m0, s{self.sSlot+slot_idx}, s{self.sM0B}")
        A("s_nop 0")
        for j in range(self.b_per):
            A(f"buffer_load_dwordx4 v{vbase+j}, s[{srd_}:{srd_+3}], s{sOff} offen offset:{j*1024} lds")

    def compute_step_paced(self, acc, mid=None, prio=2, pace="s_sleep 1", pace2=None):
        A = self.A; n = self.nreads
        pace2 = pace2 or pace
        def mf(buf, nb, mb):
            if prio: A(f"s_setprio {prio}")
            A(f"v_mfma_f32_32x32x16_bf16 {vr(acc(nb,mb),16)}, {vr(self.Wf(buf,nb),4)}, {vr(self.Xf(buf,mb),4)}, {vr(acc(nb,mb),16)}")
            if prio: A("s_setprio 0")
        self.reads(0, 0)
        self.reads(1, 1)
        if mid: mid()
        blocks = [(nb, mb) for nb in range(self.TN) for mb in range(self.TM)]
        for kk in range(4):
            buf = kk % 2
            A(f"s_waitcnt lgkmcnt({n if kk < 3 else 0})")
            for i, (nb, mb) in enumerate(blocks):
                mf(buf, nb, mb)
                if i < len(blocks) - 1:
                    if pace: A(pace)
            if kk + 2 < 4:
                self.reads(kk + 2, buf)
            if kk < 3 and pace2: A(pace2)
```

```python
from asmlib import *
import asmlib
import math

import os
WS_BASE = int(os.environ.get('WS_BASE', '0'), 0)
WS_QKV = WS_BASE + 0
QKV_HEAD = 294912
QKV_SIZE = 32 * QKV_HEAD
WS_Z = WS_BASE + 0x900000
Z_SIZE = 2048 * 1728 * 2
WS_Z2N = WS_BASE + 0x1000000
Z2N_PITCH = 1792
Z2N_SIZE = 2048 * Z2N_PITCH
WS_O = WS_BASE + 0x1400000
O_SIZE = 2048 * 640 * 2
WS_U = WS_BASE + 0x1800000
U_PITCH = 1792
U_SIZE = 2048 * U_PITCH
WS_GATE = WS_BASE + 0x1C00000
GATE_SIZE = 2048 * 4
WS_FLAG = WS_BASE + 0x1D00000
FLAG_SIZE = 8192

QSCALE = (20 ** -0.5) * math.log2(math.e)
LOG2E = math.log2(math.e)
GC0 = -2.0 * math.sqrt(2.0 / math.pi) * LOG2E
GC1 = GC0 * 0.044715

def gelu_pk(A, regs, tmp, cvec):
    c1, c0, one = cvec
    n = len(regs)
    t = [tmp + 2 * i for i in range(n)]
    for i, r in enumerate(regs):
        A(f"v_pk_mul_f32 {vr(t[i],2)}, {vr(r,2)}, {vr(r,2)}")
    for i, r in enumerate(regs):
        A(f"v_pk_fma_f32 {vr(t[i],2)}, {vr(t[i],2)}, {vr(c1,2)}, {vr(c0,2)}")
    for i, r in enumerate(regs):
        A(f"v_pk_mul_f32 {vr(t[i],2)}, {vr(t[i],2)}, {vr(r,2)}")
    for i in range(n):
        A(f"v_exp_f32 v{t[i]}, v{t[i]}")
        A(f"v_exp_f32 v{t[i]+1}, v{t[i]+1}")
    A("s_nop 0")
    for i in range(n):
        A(f"v_pk_add_f32 {vr(t[i],2)}, {vr(t[i],2)}, {vr(one,2)}")
    for i in range(n):
        A(f"v_rcp_f32 v{t[i]}, v{t[i]}")
        A(f"v_rcp_f32 v{t[i]+1}, v{t[i]+1}")
    A("s_nop 0")
    for i, r in enumerate(regs):
        A(f"v_pk_mul_f32 {vr(r,2)}, {vr(r,2)}, {vr(t[i],2)}")

def gen_k1(A, name="k1_kernel"):
    kernel_begin(A, name)
    NST = 10
    SLOT = 49152
    vLane, vTmp = 1, 2
    vDA = 10
    vDB = 14
    vXb = 16
    vWb = 20
    vXc = 22
    vWc = 26
    vF = 28
    vAcc = 60
    vE = 124
    NV = 168
    def Xf(buf, mb): return vF + buf * 16 + mb * 4
    def Wf(buf, nb): return vF + buf * 16 + 8 + nb * 4
    def acc(nb, mb): return vAcc + (nb * 2 + mb) * 16

    A("s_cmp_ge_u32 s2, 256")
    A(f"s_cbranch_scc1 {name}_exit")
    ts_begin(A)
    A("s_load_dwordx4 s[36:39], s[0:1], 0")
    A("s_load_dwordx4 s[40:43], s[0:1], 24")
    A("s_load_dwordx2 s[44:45], s[0:1], 64")
    A("s_load_dwordx2 s[46:47], s[0:1], 88")
    A(f"v_and_b32 v{vLane}, 63, v0")
    A("v_lshrrev_b32 v2, 6, v0")
    A("s_and_b32 s48, s2, 7")
    A("v_readfirstlane_b32 s20, v2")
    A("s_lshr_b32 s49, s2, 3")
    A("s_lshr_b32 s21, s20, 1")
    A("s_and_b32 s22, s20, 1")
    A("s_and_b32 s23, s48, 1")
    A("s_lshl_b32 s23, s23, 2")
    A("s_and_b32 s50, s49, 3")
    A("s_add_u32 s23, s23, s50")
    A("s_lshr_b32 s50, s48, 1")
    A("s_xor_b32 s50, s50, s48")
    A("s_and_b32 s50, s50, 1")
    A("s_mul_i32 s27, s50, 5")
    A("s_lshr_b32 s51, s49, 2")
    A("s_lshr_b32 s50, s48, 1")
    A("s_and_b32 s50, s50, 1")
    A("s_waitcnt lgkmcnt(0)")
    A("s_or_b32 s53, s2, s20")
    A("s_cmp_lg_u32 s53, 0")
    A(f"s_cbranch_scc1 {name}_nozero")
    srd(A, 16, 46, 47, WS_FLAG, FLAG_SIZE)
    A(f"v_lshlrev_b32 v2, 4, v{vLane}")
    for i in range(4): A(f"v_mov_b32 v{4+i}, 0")
    for i in range(4):
        A(f"buffer_store_dwordx4 v[4:7], v2, s[16:19], 0 offen offset:{i*1024}")
    A("s_movk_i32 s53, 4096")
    for i in range(4):
        A(f"buffer_store_dwordx4 v[4:7], v2, s[16:19], s53 offen offset:{i*1024}")
    A.label(f"{name}_nozero")
    A("s_cmp_ge_u32 s48, 4")
    A(f"s_cbranch_scc1 {name}_zsetup")
    A("s_mov_b32 s25, 0")
    A("s_lshl_b32 s24, s50, 3")
    A("s_add_u32 s24, s24, s51")
    srd(A, 8, 36, 37, 0, 2048 * 1280)
    srd(A, 12, 38, 39, 0, 640 * 3840)
    srd(A, 16, 46, 47, WS_QKV, QKV_SIZE)
    A("s_movk_i32 s26, 3840")
    A("s_mul_i32 s52, s24, 240")
    A(f"s_branch {name}_common")
    A.label(f"{name}_zsetup")
    A("s_cmp_ge_u32 s49, 28")
    A(f"s_cbranch_scc1 {name}_gate")
    A("s_mov_b32 s25, 1")
    A("s_mul_i32 s24, s50, 7")
    A("s_add_u32 s24, s24, s51")
    srd(A, 8, 36, 37, 0, 2048 * 1280)
    srd(A, 12, 42, 43, 0, 640 * 3456)
    srd(A, 16, 46, 47, WS_Z, Z_SIZE)
    A("s_movk_i32 s26, 3456")
    A("s_lshl_b32 s52, s24, 8")
    A.label(f"{name}_common")
    A(f"v_lshrrev_b32 v2, 3, v{vLane}")
    A(f"v_and_b32 v3, 7, v{vLane}")
    A("s_lshl_b32 s53, s23, 8")
    A("s_lshl_b32 s54, s20, 5")
    A("s_add_u32 s53, s53, s54")
    A("v_add_u32 v4, s53, v2")
    A("s_movk_i32 s54, 1280")
    A("v_mul_lo_u32 v4, v4, s54")
    A("v_lshrrev_b32 v5, 1, v2")
    for j in range(4):
        if j & 1:
            A("v_or_b32 v6, 4, v5")
            A("v_xor_b32 v6, v6, v3")
        else:
            A("v_xor_b32 v6, v5, v3")
        A(f"v_lshl_add_u32 v6, v6, 4, v4")
        if j:
            A(f"v_add_u32 v{vDA+j}, {j*(8*1280-1024)}, v6")
        else:
            A(f"v_mov_b32 v{vDA}, v6")
    A(f"v_lshrrev_b32 v2, 4, v{vLane}")
    A(f"v_and_b32 v3, 15, v{vLane}")
    A("v_lshlrev_b32 v5, 2, v2")
    A("v_xor_b32 v3, v3, v5")
    A("s_lshl_b32 s53, s20, 3")
    A("v_add_u32 v4, s53, v2")
    A("v_mul_lo_u32 v4, v4, s26")
    A("v_lshl_add_u32 v4, v3, 4, v4")
    A(f"v_add_u32 v{vDB}, s52, v4")
    A("s_lshl_b32 s53, s26, 2")
    A("s_sub_u32 s53, s53, 1024")
    A(f"v_add_u32 v{vDB+1}, s53, v{vDB}")
    A("s_lshl_b32 s33, s26, 6")
    A("s_lshl_b32 s34, s20, 12")
    A("s_lshl_b32 s35, s20, 11")
    A("s_add_u32 s35, s35, 32768")
    A("s_mov_b32 s30, 0")
    A(f"s_mov_b32 s31, {SLOT}")
    A(f"s_mov_b32 s32, {2*SLOT}")

    def issue(slot_s):
        A("s_lshl_b32 s28, s27, 7")
        A("s_mul_i32 s29, s27, s33")
        A(f"s_add_u32 m0, s{slot_s}, s34")
        A("s_add_u32 s27, s27, 1")
        for j in range(4):
            A(f"buffer_load_dwordx4 v{vDA+j}, s[8:11], s28 offen offset:{j*1024} lds")
        A(f"s_add_u32 m0, s{slot_s}, s35")
        A("s_cmp_eq_u32 s27, 10")
        for j in range(2):
            A(f"buffer_load_dwordx4 v{vDB+j}, s[12:15], s29 offen offset:{j*1024} lds")
        A("s_cselect_b32 s27, 0, s27")
    issue(30)
    issue(31)
    A(f"v_and_b32 v2, 31, v{vLane}")
    A("s_lshl_b32 s53, s21, 6")
    A("v_add_u32 v2, s53, v2")
    A("v_lshlrev_b32 v2, 7, v2")
    A(f"v_lshrrev_b32 v3, 5, v{vLane}")
    A(f"v_bfe_u32 v4, v{vLane}, 1, 3")
    for kk in range(4):
        A(f"v_or_b32 v5, {2*kk}, v3")
        A("v_xor_b32 v5, v5, v4")
        A(f"v_lshl_add_u32 v{vXb+kk}, v5, 4, v2")
    A(f"v_lshrrev_b32 v2, 5, v{vLane}")
    A(f"v_bfe_u32 v3, v{vLane}, 2, 2")
    A("v_lshl_add_u32 v4, v2, 3, v3")
    A("v_lshlrev_b32 v4, 8, v4")
    A(f"v_bfe_u32 v5, v{vLane}, 4, 1")
    A("v_lshl_add_u32 v4, v5, 5, v4")
    A(f"v_and_b32 v5, 1, v{vLane}")
    A("v_lshl_add_u32 v4, v5, 4, v4")
    A(f"v_bfe_u32 v5, v{vLane}, 1, 1")
    A("v_lshl_add_u32 v4, v5, 3, v4")
    A("v_add_u32 v4, 32768, v4")
    A("s_lshl_b32 s53, s22, 1")
    for nb in range(2):
        A(f"s_add_u32 s54, s53, {nb}")
        A("v_xor_b32 v5, s54, v3")
        A(f"v_lshl_add_u32 v{vWb+nb}, v5, 6, v4")
    for i in range(64):
        A(f"v_mov_b32 v{vAcc+i}, 0")
    A("s_mov_b32 s55, 0")
    A("s_mov_b32 s56, 1")
    A("s_cmp_eq_u32 s25, 1")
    A("s_cselect_b32 s57, s24, 0")
    A("s_cmp_eq_u32 s57, 13")
    A("s_cselect_b32 s57, s22, 0")
    A.lines.append(".p2align 6")
    A.label(f"{name}_loop")
    A("s_cmp_eq_u32 s55, 9")
    A(f"s_cbranch_scc1 {name}_w0")
    A("s_waitcnt vmcnt(6)")
    A(f"s_branch {name}_w1")
    A.label(f"{name}_w0")
    A("s_waitcnt vmcnt(0)")
    A.label(f"{name}_w1")
    A("s_barrier")
    for kk in range(4):
        A(f"v_add_u32 v{vXc+kk}, s30, v{vXb+kk}")
    for nb in range(2):
        A(f"v_add_u32 v{vWc+nb}, s30, v{vWb+nb}")
    def reads(kk, buf):
        for mb in range(2):
            A(f"ds_read_b128 {vr(Xf(buf,mb),4)}, v{vXc+kk} offset:{mb*4096}")
        for nb in range(2):
            A(f"ds_read_b64_tr_b16 {vr(Wf(buf,nb),2)}, v{vWc+nb} offset:{kk*4096}")
            A(f"ds_read_b64_tr_b16 {vr(Wf(buf,nb)+2,2)}, v{vWc+nb} offset:{kk*4096+1024}")
    def mfmas(buf):
        for nb in range(2):
            for mb in range(2):
                A(f"v_mfma_f32_32x32x16_bf16 {vr(acc(nb,mb),16)}, {vr(Wf(buf,nb),4)}, {vr(Xf(buf,mb),4)}, {vr(acc(nb,mb),16)}")
    A("s_cmp_lg_u32 s57, 0")
    A(f"s_cbranch_scc1 {name}_inact")
    reads(0, 0)
    A("s_cmp_ge_u32 s55, 8")
    A(f"s_cbranch_scc1 {name}_noissue")
    issue(32)
    A.label(f"{name}_noissue")
    reads(1, 1)
    A("s_waitcnt lgkmcnt(6)")
    mfmas(0)
    reads(2, 0)
    A("s_waitcnt lgkmcnt(6)")
    mfmas(1)
    reads(3, 1)
    A("s_waitcnt lgkmcnt(6)")
    mfmas(0)
    A("s_waitcnt lgkmcnt(0)")
    mfmas(1)
    A(f"s_branch {name}_next")
    A.label(f"{name}_inact")
    A("s_cmp_ge_u32 s55, 8")
    A(f"s_cbranch_scc1 {name}_next")
    issue(32)
    A.label(f"{name}_next")
    A("s_mov_b32 s53, s30")
    A("s_mov_b32 s30, s31")
    A("s_mov_b32 s31, s32")
    A("s_mov_b32 s32, s53")
    A("s_add_u32 s55, s55, 1")
    A("s_cmp_lt_u32 s55, 10")
    A(f"s_cbranch_scc1 {name}_loop")
    ts_mark(A, 0, name, 0)
    A("s_cmp_lg_u32 s57, 0")
    A(f"s_cbranch_scc1 {name}_end")
    A("s_nop 15")
    A(f"v_and_b32 v2, 31, v{vLane}")
    A(f"v_lshrrev_b32 v3, 5, v{vLane}")
    A("s_cmp_eq_u32 s25, 1")
    A(f"s_cbranch_scc1 {name}_epiz")
    A("s_lshl_b32 s53, s23, 3")
    A("s_lshl_b32 s54, s21, 1")
    A("s_add_u32 s53, s53, s54")
    A("s_mul_i32 s53, s53, 4608")
    A("v_mul_u32_u24 v4, 48, v2")
    A("v_add_u32 v4, s53, v4")
    vOff = vE
    vOff2 = vE + 4
    vScale = vE + 8
    vC0 = vE + 12
    vC1 = vE + 16
    vP2 = vE + 20
    vD = vE + 24
    vD2 = vE + 28
    A("s_mul_i32 s58, s24, 3")
    A("s_lshl_b32 s59, s22, 3")
    A(f"s_mov_b32 s60, {QKV_HEAD}")
    A(f"s_mov_b32 s61, {fhex(QSCALE)}")
    A("s_mov_b32 s62, 0x3f803f80")
    A("s_movk_i32 s63, 0x3f80")
    A("s_mov_b32 s64, 0x7fff0000")
    for u in range(4):
        nb, s = u >> 1, u & 1
        A(f"v_add_u32 v5, {4*nb+2*s}, v3")
        A("v_add_u32 v5, s59, v5")
        A("v_mul_u32_u24 v6, 52, v5")
        A("v_lshrrev_b32 v6, 8, v6")
        A("v_mul_u32_u24 v7, 5, v6")
        A("v_sub_u32 v7, v5, v7")
        A("v_add_u32 v6, s58, v6")
        A("v_lshrrev_b32 v8, 4, v6")
        A("v_and_b32 v6, 15, v6")
        A("v_lshlrev_b32 v6, 1, v6")
        A("v_cmp_le_u32 vcc, 3, v7")
        A("s_nop 1")
        A("v_addc_co_u32 v6, vcc, 0, v6, vcc")
        A("v_cmp_le_u32 vcc, 3, v7")
        A("v_subrev_u32 v9, 2, v7")
        A("s_nop 0")
        A("v_cndmask_b32 v9, v7, v9, vcc")
        A("v_mul_lo_u32 v6, v6, s60")
        A("v_lshl_add_u32 v6, v9, 4, v6")
        A("v_cmp_eq_u32 vcc, 0, v8")
        A("v_subrev_u32 v9, 1, v8")
        A("s_nop 0")
        A("v_cndmask_b32 v9, v9, 2, vcc")
        A("v_mul_u32_u24 v9, 0x600, v9")
        A("v_add_u32 v6, v6, v9")
        A("v_add_u32 v6, v6, v4")
        A(f"v_mov_b32 v{vScale+u}, 1.0")
        A(f"v_mov_b32 v9, s61")
        A(f"v_cndmask_b32 v{vScale+u}, v{vScale+u}, v9, vcc")
        A(f"v_mov_b32 v9, s62")
        A(f"v_cndmask_b32 v{vC0+u}, v9, 0, vcc")
        A(f"v_mov_b32 v9, s63")
        A(f"v_cndmask_b32 v{vC1+u}, v9, 0, vcc")
        A("v_cmp_eq_u32 vcc, 15, v5")
        A("v_mov_b32 v9, s64")
        A("s_nop 0")
        A(f"v_cndmask_b32 v{vOff+u}, v6, v9, vcc")
        A(f"v_cmp_eq_u32 s[{66+2*u}:{67+2*u}], 2, v7")
        A(f"v_add_u32 v6, {QKV_HEAD-32}, v6")
        A("s_nop 0")
        A(f"v_cndmask_b32 v{vOff2+u}, v9, v6, s[{66+2*u}:{67+2*u}]")
    for mb in range(2):
        for u in range(4):
            nb, s = u >> 1, u & 1
            a = acc(nb, mb) + 8 * s
            for i in range(8):
                A(f"v_mul_f32 v{a+i}, v{a+i}, v{vScale+u}")
            for i in range(4):
                A(f"v_cvt_pk_bf16_f32 v{vD+i}, v{a+2*i}, v{a+2*i+1}")
            maybe_p2 = (nb, s) in [(0, 1), (1, 1), (1, 0)]
            if maybe_p2:
                A(f"v_mov_b32 v{vD2}, v{vC0+u}")
                A(f"v_mov_b32 v{vD2+1}, v{vC1+u}")
                A(f"v_mov_b32 v{vD2+2}, v{vD+2}")
                A(f"v_mov_b32 v{vD2+3}, v{vD+3}")
                A(f"v_cndmask_b32 v{vD+2}, v{vD+2}, v{vC0+u}, s[{66+2*u}:{67+2*u}]")
                A(f"v_cndmask_b32 v{vD+3}, v{vD+3}, v{vC1+u}, s[{66+2*u}:{67+2*u}]")
            A(f"buffer_store_dwordx4 {vr(vD,4)}, v{vOff+u}, s[16:19], 0 offen offset:{0}" if mb == 0 else
              f"buffer_store_dwordx4 {vr(vD,4)}, v{vOff+u}, s[16:19], s65 offen")
            if maybe_p2:
                A(f"buffer_store_dwordx4 {vr(vD2,4)}, v{vOff2+u}, s[16:19], 0 offen" if mb == 0 else
                  f"buffer_store_dwordx4 {vr(vD2,4)}, v{vOff2+u}, s[16:19], s65 offen")
            A("s_nop 1")
        if mb == 0:
            A("s_movk_i32 s65, 4608")
    A(f"s_branch {name}_end")
    A.label(f"{name}_epiz")
    A("s_lshl_b32 s53, s23, 8")
    A("s_lshl_b32 s54, s21, 6")
    A("s_add_u32 s53, s53, s54")
    A("v_add_u32 v4, s53, v2")
    A("s_movk_i32 s54, 3456")
    A("v_mul_lo_u32 v4, v4, s54")
    A("v_lshl_add_u32 v4, v3, 4, v4")
    A("s_lshl_b32 s53, s24, 8")
    A("s_lshl_b32 s54, s22, 7")
    A("s_add_u32 s53, s53, s54")
    A("v_add_u32 v4, s53, v4")
    vC = vE
    A(f"v_mov_b32 v{vC}, {fhex(GC1)}")
    A(f"v_mov_b32 v{vC+1}, {fhex(GC1)}")
    A(f"v_mov_b32 v{vC+2}, {fhex(GC0)}")
    A(f"v_mov_b32 v{vC+3}, {fhex(GC0)}")
    A(f"v_mov_b32 v{vC+4}, 1.0")
    A(f"v_mov_b32 v{vC+5}, 1.0")
    vT = vE + 8
    vD = vE + 24
    A(f"s_mov_b32 s65, {32*3456}")
    for mb in range(2):
        for nb in range(2):
            a = acc(nb, mb)
            gelu_pk(A, [a + 2 * i for i in range(8)], vT, (vC, vC + 2, vC + 4))
            for s in range(2):
                for i in range(4):
                    A(f"v_cvt_pk_bf16_f32 v{vD+4*s+i}, v{a+8*s+2*i}, v{a+8*s+2*i+1}")
            for s in range(2):
                so = "0" if mb == 0 else "s65"
                A(f"buffer_store_dwordx4 {vr(vD+4*s,4)}, v4, s[16:19], {so} offen offset:{nb*64+s*32}")
            A("s_nop 1")
    A(f"s_branch {name}_end")
    A.label(f"{name}_gate")
    A("s_sub_u32 s50, s48, 4")
    A("s_lshl_b32 s50, s50, 2")
    A("s_sub_u32 s51, s49, 28")
    A("s_add_u32 s50, s50, s51")
    A("s_lshl_b32 s50, s50, 7")
    A("s_lshl_b32 s51, s20, 4")
    A("s_add_u32 s50, s50, s51")
    srd(A, 8, 36, 37, 0, 2048 * 1280)
    srd(A, 12, 44, 45, 0, 1280)
    srd(A, 16, 46, 47, WS_GATE, GATE_SIZE)
    A(f"v_lshrrev_b32 v2, 4, v{vLane}")
    A(f"v_and_b32 v3, 15, v{vLane}")
    A("v_mul_u32_u24 v3, 80, v3")
    A("v_add_u32 v4, s50, v2")
    A("s_movk_i32 s54, 1280")
    A("v_mul_lo_u32 v5, v4, s54")
    A("v_add_u32 v5, v5, v3")
    for i in range(5):
        A(f"buffer_load_dwordx4 {vr(20+4*i,4)}, v3, s[12:15], 0 offen offset:{16*i}")
    for it in range(4):
        for i in range(5):
            A(f"buffer_load_dwordx4 {vr(40+20*it+4*i,4)}, v5, s[8:11], 0 offen offset:{16*i}")
        A(f"v_add_u32 v5, {4*1280}, v5")
    A("s_waitcnt vmcnt(0)")
    for it in range(4):
        A(f"v_mov_b32 v{10+it}, 0")
        for i in range(20):
            A(f"v_dot2_f32_bf16 v{10+it}, v{40+20*it+i}, v{20+i}, v{10+it}")
    A("s_nop 3")
    for sh in (8, 4, 2, 1):
        for it in range(4):
            A(f"v_add_f32_dpp v{10+it}, v{10+it}, v{10+it} row_ror:{sh} row_mask:0xf bank_mask:0xf")
        A("s_nop 1")
    for it in range(4):
        A(f"v_mul_f32 v{10+it}, {fhex(-LOG2E)}, v{10+it}")
    for it in range(4):
        A(f"v_exp_f32 v{10+it}, v{10+it}")
    A("s_nop 0")
    for it in range(4):
        A(f"v_add_f32 v{10+it}, 1.0, v{10+it}")
    for it in range(4):
        A(f"v_rcp_f32 v{10+it}, v{10+it}")
    A("v_lshlrev_b32 v4, 2, v4")
    A(f"v_and_b32 v3, 15, v{vLane}")
    A("v_cmp_eq_u32 vcc, 0, v3")
    A("s_and_saveexec_b64 s[52:53], vcc")
    for it in range(4):
        A(f"buffer_store_dword v{10+it}, v4, s[16:19], 0 offen offset:{16*it}")
    A.label(f"{name}_end")
    if asmlib.INSTR:
        A("s_mov_b64 exec, -1")
        A("s_waitcnt vmcnt(0)")
    ts_mark(A, 1, name, 0)
    A.label(f"{name}_exit")
    A("s_endpgm")
    return NV, 102
```

```python
from asmlib import *
import asmlib
from k1 import *

def gen_attn(A, name="k2_kernel", body_only=False, nobar=False, noread=False, order=0, prio=0, nonop=False, mprio=0, aprio=0):
    if not body_only: kernel_begin(A, name)
    SLOT = 24576
    FLAG = 3 * SLOT
    vLane = 1
    vDK = 10
    vK1b, vK2b, vVb = 11, 12, 13
    vK1c, vK2c, vVc = 14, 15, 16
    vK1n, vK2n, vVn = 17, 18, 19
    vQ1 = 20
    vQ2 = 24
    vNM = 26
    vKf = 28
    vVf = 44
    vP = 60
    vS = 68
    vO = 100
    vT = 116
    NV = 128
    def K1(b): return vKf + 8 * b
    def K2(b): return vKf + 8 * b + 4
    def Vf(b, j): return vVf + 8 * b + 4 * j
    def S(b): return vS + 16 * b

    A("s_cmp_ge_u32 s2, 256")
    A(f"s_cbranch_scc1 {name}_exit")
    ts_begin(A)
    A("s_load_dwordx2 s[46:47], s[0:1], 88")
    A(f"v_and_b32 v{vLane}, 63, v0")
    A("v_lshrrev_b32 v2, 6, v0")
    A("s_and_b32 s48, s2, 7")
    A("v_readfirstlane_b32 s20, v2")
    A("s_lshr_b32 s49, s2, 3")
    A("s_lshl_b32 s21, s48, 2")
    A("s_and_b32 s50, s49, 3")
    A("s_add_u32 s21, s21, s50")
    A("s_lshr_b32 s22, s49, 2")
    A("s_and_b32 s23, s21, 1")
    A("s_waitcnt lgkmcnt(0)")
    srd(A, 8, 46, 47, WS_QKV, QKV_SIZE)
    srd(A, 16, 46, 47, WS_O, O_SIZE)
    A(f"s_mul_i32 s24, s21, {QKV_HEAD}")
    A("s_mul_i32 s25, s20, 4608")
    A("s_add_u32 s25, s25, s24")
    A(f"v_lshlrev_b32 v2, 4, v{vLane}")
    A(f"v_add_u32 v{vDK}, s25, v2")
    A("s_mul_i32 s26, s20, 3072")
    A("s_lshl_b32 s27, s22, 3")
    A("s_add_u32 s27, s27, s20")
    A("s_mul_i32 s28, s27, 4608")
    A("s_add_u32 s28, s28, s24")
    A("s_add_u32 s28, s28, 3072")
    A(f"v_and_b32 v2, 31, v{vLane}")
    A(f"v_lshrrev_b32 v3, 5, v{vLane}")
    A("v_mul_u32_u24 v4, 48, v2")
    A("v_lshl_add_u32 v5, v3, 4, v4")
    A("v_lshl_add_u32 v6, v3, 3, v4")
    A(f"v_add_u32 v{vK2b}, 32, v6")
    A(f"v_mov_b32 v{vK1b}, v5")
    A("v_add_u32 v7, s28, v5")
    A(f"v_add_u32 v8, s28, v{vK2b}")
    A(f"buffer_load_dwordx4 {vr(vQ1,4)}, v7, s[8:11], 0 offen")
    A(f"buffer_load_dwordx2 {vr(vQ2,2)}, v8, s[8:11], 0 offen")
    A(f"v_bfe_u32 v4, v{vLane}, 2, 2")
    A("v_lshl_add_u32 v4, v3, 2, v4")
    A("v_mul_u32_u24 v4, 48, v4")
    A(f"v_and_b32 v5, 3, v{vLane}")
    A(f"v_bfe_u32 v6, v{vLane}, 4, 1")
    A("v_and_b32 v7, 1, v5")
    A("v_lshlrev_b32 v7, 1, v7")
    A("v_lshrrev_b32 v8, 1, v5")
    A("v_or_b32 v7, v7, v8")
    A("v_lshlrev_b32 v7, 3, v7")
    A("s_lshl_b32 s29, s23, 3")
    A("v_add_u32 v7, s29, v7")
    A("s_add_u32 s30, s29, 32")
    A("s_cmp_eq_u32 s23, 0")
    A("s_cselect_b32 s31, 40, 0")
    A("v_mov_b32 v8, s31")
    A("v_mov_b32 v9, s30")
    A("v_cmp_eq_u32 vcc, 0, v5")
    A("s_nop 1")
    A("v_cndmask_b32 v8, v8, v9, vcc")
    A("v_cmp_eq_u32 vcc, 1, v6")
    A("s_nop 1")
    A("v_cndmask_b32 v7, v7, v8, vcc")
    A("v_add_u32 v4, v4, v7")
    A(f"v_add_u32 v{vVb}, 1536, v4")
    A("s_mov_b32 s32, 0")
    A("s_cmp_eq_u32 s23, 0")
    A("s_cselect_b32 s33, -1, 0")
    A("s_cselect_b32 s34, 0, -1")
    A("s_mov_b32 s35, 0")
    A("s_mov_b32 s60, 0")
    A(f"v_mov_b32 v{vNM}, 0")

    inloop = [False]
    def tile_order1(t, cb, nb, s):
        E = lambda i: A(f"v_exp_f32 v{s+i}, v{s+i}")
        C = lambda i: A(f"v_cvt_pk_bf16_f32 v{vP+i}, v{s+2*i}, v{s+2*i+1}")
        A("s_waitcnt lgkmcnt(4)")
        qk(nb, nb)
        for i in range(0, 5): E(i)
        if t + 2 < 8: rdK(cb, vK1c, vK2c, t + 2)
        else: rdK(cb, vK1n, vK2n, t + 2 - 8)
        qk2(nb, nb)
        for i in range(5, 8): E(i)
        for i in range(4): C(i)
        E(8); E(9)
        A("s_waitcnt lgkmcnt(2)")
        A(f"v_mfma_f32_32x32x16_bf16 {vr(vO,16)}, {vr(Vf(cb,0),4)}, {vr(vP,4)}, {vr(vO,16)}")
        for i in range(10, 16): E(i)
        for i in range(4, 8): C(i)
        if t + 1 < 8: rdV(nb, vVc, t + 1)
        else: rdV(nb, vVn, 0)
        A(f"v_mfma_f32_32x32x16_bf16 {vr(vO,16)}, {vr(Vf(cb,1),4)}, {vr(vP+4,4)}, {vr(vO,16)}")
    def tile_order2(t, cb, nb, s):
        sp = S(nb)
        E = lambda i: A(f"v_exp_f32 v{s+i}, v{s+i}")
        C = lambda i: A(f"v_cvt_pk_bf16_f32 v{vP+i}, v{s+2*i}, v{s+2*i+1}")
        def P(on):
            if mprio: A(f"s_setprio {mprio if on else aprio}")
        A("s_waitcnt lgkmcnt(4)")
        P(1); qk(nb, nb); P(0)
        if t + 2 < 8: rdK(cb, vK1c, vK2c, t + 2)
        else: rdK(cb, vK1n, vK2n, t + 2 - 8)
        for i in range(0, 4): E(i)
        P(1); A(f"v_mfma_f32_32x32x16_bf16 {vr(vO,16)}, {vr(Vf(nb,1),4)}, {vr(vP+4,4)}, {vr(vO,16)}"); P(0)
        if t + 1 < 8: rdV(nb, vVc, t + 1)
        else: rdV(nb, vVn, 0)
        for i in range(4, 8): E(i)
        C(0); C(1)
        P(1); qk2(nb, nb); P(0)
        C(2); C(3)
        for i in range(8, 12): E(i)
        A("s_waitcnt lgkmcnt(6)")
        P(1); A(f"v_mfma_f32_32x32x16_bf16 {vr(vO,16)}, {vr(Vf(cb,0),4)}, {vr(vP,4)}, {vr(vO,16)}"); P(0)
        for i in range(12, 16): E(i)
        C(4); C(5); C(6); C(7)
    def tile_order3(t, cb, nb, s):
        def P(on):
            if mprio: A(f"s_setprio {mprio if on else aprio}")
        E = lambda i: A(f"v_exp_f32 v{s+i}, v{s+i}")
        C = lambda i: A(f"v_cvt_pk_bf16_f32 v{vP+i}, v{s+2*i}, v{s+2*i+1}")
        A("s_waitcnt lgkmcnt(4)")
        P(1)
        A(f"v_mfma_f32_32x32x16_bf16 {vr(vO,16)}, {vr(Vf(nb,0),4)}, {vr(vP,4)}, {vr(vO,16)}")
        qk(nb, nb)
        A(f"v_mfma_f32_32x32x16_bf16 {vr(vO,16)}, {vr(Vf(nb,1),4)}, {vr(vP+4,4)}, {vr(vO,16)}")
        qk2(nb, nb)
        P(0)
        if t + 2 < 8: rdK(cb, vK1c, vK2c, t + 2)
        else: rdK(cb, vK1n, vK2n, t + 2 - 8)
        if t + 1 < 8: rdV(nb, vVc, t + 1)
        else: rdV(nb, vVn, 0)
        for i in range(0, 8): E(i)
        for i in range(0, 4): C(i)
        for i in range(8, 16): E(i)
        for i in range(4, 8): C(i)
        A("s_nop 1")
    def issue(chunk_s, slot_s):
        A(f"s_mul_i32 s36, s{chunk_s}, 36864")
        A(f"s_add_u32 m0, s{slot_s}, s26")
        A("s_nop 0")
        for j in range(3):
            A(f"buffer_load_dwordx4 v{vDK}, s[8:11], s36 offen offset:{j*1024} lds")

    def rdK(buf, aK1, aK2, tile):
        if noread and inloop[0]: return
        A(f"ds_read_b128 {vr(K1(buf),4)}, v{aK1} offset:{tile*3072}")
        A(f"ds_read_b64 {vr(K2(buf),2)}, v{aK2} offset:{tile*3072}")
    def rdV(buf, aV, tile):
        if noread and inloop[0]: return
        for j in range(2):
            for rd in range(2):
                A(f"ds_read_b64_tr_b16 {vr(Vf(buf,j)+2*rd,2)}, v{aV} offset:{tile*3072+(16*j+8*rd)*48}")
    def qk(sb, kb, first_only=False):
        A(f"v_mfma_f32_32x32x16_bf16 {vr(S(sb),16)}, {vr(K1(kb),4)}, {vr(vQ1,4)}, 0")
    def qk2(sb, kb):
        A(f"v_mfma_f32_32x32x8_bf16 {vr(S(sb),16)}, {vr(K2(kb),2)}, {vr(vQ2,2)}, {vr(S(sb),16)}")

    def set_specials():
        t = vT
        A(f"v_cvt_pk_bf16_f32 v{t}, v{vNM}, v{vNM}")
        A(f"v_lshlrev_b32 v{t}, 16, v{t}")
        A(f"v_sub_f32 v{t+1}, v{vNM}, v{t}")
        A(f"v_cvt_pk_bf16_f32 v{t+2}, v{t+1}, v{t+1}")
        A(f"v_and_b32 v{t+2}, 0xffff0000, v{t+2}")
        A(f"v_sub_f32 v{t+2}, v{t+1}, v{t+2}")
        A(f"v_cvt_pk_bf16_f32 v{t+3}, v{vNM}, v{t+1}")
        A(f"v_mov_b32 v{t+5}, 0")
        A(f"v_cvt_pk_bf16_f32 v{t+4}, v{t+2}, v{t+5}")
        A(f"v_cndmask_b32 v{vQ2}, v{vQ2}, v{t+3}, s[32:33]")
        A(f"v_cndmask_b32 v{vQ2+1}, v{vQ2+1}, v{t+4}, s[32:33]")
        A(f"v_cndmask_b32 v{vQ1}, v{vQ1}, v{t+3}, s[34:35]")
        A(f"v_cndmask_b32 v{vQ1+1}, v{vQ1+1}, v{t+4}, s[34:35]")
        A("s_nop 1")

    def rowmax(sb, dst):
        s = S(sb)
        A(f"v_max3_f32 v{dst}, v{s}, v{s+1}, v{s+2}")
        for i in range(3, 15, 2):
            A(f"v_max3_f32 v{dst}, v{dst}, v{s+i}, v{s+i+1}")
        A(f"v_max_f32 v{dst}, v{dst}, v{s+15}")
        A(f"v_mov_b32 v{dst+1}, v{dst}")
        A("s_nop 1")
        A(f"v_permlane32_swap_b32 v{dst}, v{dst+1}")
        A("s_nop 1")
        A(f"v_max_f32 v{dst}, v{dst}, v{dst+1}")

    def start_stream():
        A("s_mov_b32 s40, 0")
        A(f"s_mov_b32 s41, {SLOT}")
        A(f"s_mov_b32 s42, {2*SLOT}")
        A("s_mov_b32 s43, 0")
        issue(43, 40)
        A("s_mov_b32 s43, 1")
        issue(43, 41)
        A("s_mov_b32 s43, 2")
        A("s_mov_b32 s44, 0")

    def chunk_top(nobar=False):
        if not nobar:
            A("s_waitcnt vmcnt(0)")
            if aprio: A("s_setprio 0")
            A("s_barrier")
            if aprio: A(f"s_setprio {aprio}")
        l = A.newlabel(f"{name}_noiss")
        A("s_cmp_ge_u32 s43, 8")
        A(f"s_cbranch_scc1 {l}")
        issue(43, 42)
        A("s_add_u32 s43, s43, 1")
        A.label(l)
        for (b, c, n) in ((vK1b, vK1c, vK1n), (vK2b, vK2c, vK2n), (vVb, vVc, vVn)):
            A(f"v_add_u32 v{c}, s40, v{b}")
            A(f"v_add_u32 v{n}, s41, v{b}")
    def chunk_rotate():
        A("s_mov_b32 s45, s40")
        A("s_mov_b32 s40, s41")
        A("s_mov_b32 s41, s42")
        A("s_mov_b32 s42, s45")
        A("s_add_u32 s44, s44, 1")

    A.label(f"{name}_attempt")
    start_stream()
    A("s_waitcnt vmcnt(0)")
    A("s_barrier")
    for (b, c) in ((vK1b, vK1c), (vK2b, vK2c), (vVb, vVc)):
        A(f"v_mov_b32 v{c}, v{b}")
    rdK(0, vK1c, vK2c, 0)
    rdK(1, vK1c, vK2c, 1)
    rdV(0, vVc, 0)
    for i in range(16):
        A(f"v_mov_b32 v{vO+i}, 0")
    A("s_waitcnt lgkmcnt(0)")
    A("s_cmp_lg_u32 s60, 0")
    A(f"s_cbranch_scc1 {name}_havem")
    qk(0, 0)
    qk2(0, 0)
    A("s_nop 15")
    A("s_nop 3")
    rowmax(0, vT + 8)
    A(f"v_sub_f32 v{vNM}, 0, v{vT+8}")
    set_specials()
    A.label(f"{name}_havem")
    qk(0, 0)
    qk2(0, 0)
    A("s_nop 7")
    if order == 2:
        for i in range(4, 8): A(f"v_mov_b32 v{vP+i}, 0")
        for i in range(4): A(f"v_mov_b32 v{Vf(1,1)+i}, 0")
    if order == 3:
        for i in range(8): A(f"v_mov_b32 v{vP+i}, 0")
        for i in range(8): A(f"v_mov_b32 v{Vf(1,0)+i}, 0")
    if prio:
        A("s_cmp_ge_u32 s20, 4")
        A(f"s_cbranch_scc0 {name}_noprio")
        A("s_setprio 1")
        A.label(f"{name}_noprio")
    if aprio: A(f"s_setprio {aprio}")
    ts_mark(A, 0, name, 1)
    inloop[0] = True
    A.lines.append(".p2align 6")
    A.label(f"{name}_loop")
    chunk_top(nobar)
    for t in range(8):
        cb, nb = t % 2, (t + 1) % 2
        s = S(cb)
        if order == 1:
            tile_order1(t, cb, nb, s); continue
        if order == 2:
            tile_order2(t, cb, nb, s); continue
        if order == 3:
            tile_order3(t, cb, nb, s); continue
        A("s_waitcnt lgkmcnt(0)")
        qk(nb, nb)
        if t + 2 < 8: rdK(cb, vK1c, vK2c, t + 2)
        else: rdK(cb, vK1n, vK2n, t + 2 - 8)
        for i in range(4):
            A(f"v_exp_f32 v{s+i}, v{s+i}")
        qk2(nb, nb)
        if t + 1 < 8: rdV(nb, vVc, t + 1)
        else: rdV(nb, vVn, 0)
        for i in range(4, 8):
            A(f"v_exp_f32 v{s+i}, v{s+i}")
        for i in range(4):
            A(f"v_cvt_pk_bf16_f32 v{vP+i}, v{s+2*i}, v{s+2*i+1}")
        for i in range(8, 10):
            A(f"v_exp_f32 v{s+i}, v{s+i}")
        A(f"v_mfma_f32_32x32x16_bf16 {vr(vO,16)}, {vr(Vf(cb,0),4)}, {vr(vP,4)}, {vr(vO,16)}")
        for i in range(10, 16):
            A(f"v_exp_f32 v{s+i}, v{s+i}")
        for i in range(4, 8):
            A(f"v_cvt_pk_bf16_f32 v{vP+i}, v{s+2*i}, v{s+2*i+1}")
        A("s_nop 1")
        A(f"v_mfma_f32_32x32x16_bf16 {vr(vO,16)}, {vr(Vf(cb,1),4)}, {vr(vP+4,4)}, {vr(vO,16)}")
    chunk_rotate()
    A("s_cmp_lt_u32 s44, 8")
    A(f"s_cbranch_scc1 {name}_loop")
    if order == 2:
        A("s_nop 1")
        A(f"v_mfma_f32_32x32x16_bf16 {vr(vO,16)}, {vr(Vf(1,1),4)}, {vr(vP+4,4)}, {vr(vO,16)}")
    if order == 3:
        A("s_waitcnt lgkmcnt(0)")
        A("s_nop 1")
        A(f"v_mfma_f32_32x32x16_bf16 {vr(vO,16)}, {vr(Vf(1,0),4)}, {vr(vP,4)}, {vr(vO,16)}")
        A(f"v_mfma_f32_32x32x16_bf16 {vr(vO,16)}, {vr(Vf(1,1),4)}, {vr(vP+4,4)}, {vr(vO,16)}")
    inloop[0] = False
    ts_mark(A, 1, name, 1)
    A("s_waitcnt lgkmcnt(0)")
    A("s_nop 15")
    A(f"v_mov_b32 v{vT}, v{vO+8}")
    A(f"v_mov_b32 v{vT+1}, v{vO+8}")
    A("s_nop 1")
    A(f"v_permlane32_swap_b32 v{vT}, v{vT+1}")
    A("s_nop 1")
    A("s_cmp_lg_u32 s60, 0")
    A(f"s_cbranch_scc1 {name}_fin")
    A(f"v_mov_b32 v{vT+2}, {fhex(2.0**40)}")
    A(f"v_cmp_nlt_f32 vcc, v{vT+1}, v{vT+2}")
    A(f"v_mov_b32 v{vT+3}, {fhex(2.0**-10)}")
    A(f"v_cmp_lt_f32 s[50:51], v{vT+1}, v{vT+3}")
    A("s_nop 1")
    A("s_or_b64 vcc, vcc, s[50:51]")
    A("s_cmp_lg_u64 vcc, 0")
    A("s_cselect_b32 s52, 1, 0")
    A(f"v_mov_b32 v{vT+4}, {FLAG}")
    A(f"v_mov_b32 v{vT+5}, 0")
    A("s_barrier")
    A(f"ds_write_b32 v{vT+4}, v{vT+5}")
    A("s_waitcnt lgkmcnt(0)")
    A("s_barrier")
    A(f"v_mov_b32 v{vT+5}, s52")
    A(f"ds_or_b32 v{vT+4}, v{vT+5}")
    A("s_waitcnt lgkmcnt(0)")
    A("s_barrier")
    A(f"ds_read_b32 v{vT+5}, v{vT+4}")
    A("s_waitcnt lgkmcnt(0)")
    A(f"v_readfirstlane_b32 s52, v{vT+5}")
    A("s_nop 3")
    A("s_cmp_eq_u32 s52, 0")
    A(f"s_cbranch_scc1 {name}_fin")
    A("s_barrier")
    start_stream()
    A(f"v_mov_b32 v{vT+10}, 0xff7fffff")
    A.label(f"{name}_mloop")
    chunk_top()
    for t in range(8):
        rdK(0, vK1c, vK2c, t)
        A("s_waitcnt lgkmcnt(0)")
        qk(0, 0)
        qk2(0, 0)
        A("s_nop 15")
        A("s_nop 3")
        rowmax(0, vT + 8)
        A(f"v_max_f32 v{vT+10}, v{vT+10}, v{vT+8}")
    chunk_rotate()
    A("s_cmp_lt_u32 s44, 8")
    A(f"s_cbranch_scc1 {name}_mloop")
    A(f"v_sub_f32 v{vNM}, v{vNM}, v{vT+10}")
    set_specials()
    A("s_mov_b32 s60, 1")
    A("s_barrier")
    A(f"s_branch {name}_attempt")
    A.label(f"{name}_fin")
    A(f"v_rcp_f32 v{vT+2}, v{vT+1}")
    A("s_nop 0")
    for i in range(12):
        A(f"v_mul_f32 v{vO+i}, v{vO+i}, v{vT+2}")
    for i in range(6):
        A(f"v_cvt_pk_bf16_f32 v{vP+i}, v{vO+2*i}, v{vO+2*i+1}")
    A(f"v_and_b32 v2, 31, v{vLane}")
    A(f"v_lshrrev_b32 v3, 5, v{vLane}")
    A("s_lshl_b32 s52, s27, 5")
    A("v_add_u32 v2, s52, v2")
    A("s_movk_i32 s53, 1280")
    A("v_mul_lo_u32 v2, v2, s53")
    A("s_mul_i32 s53, s21, 40")
    A("v_add_u32 v2, s53, v2")
    A("v_lshl_add_u32 v4, v3, 4, v2")
    A(f"buffer_store_dwordx4 {vr(vP,4)}, v4, s[16:19], 0 offen")
    A("v_cmp_eq_u32 vcc, 0, v3")
    A("s_and_saveexec_b64 s[52:53], vcc")
    A(f"buffer_store_dwordx2 {vr(vP+4,2)}, v2, s[16:19], 0 offen offset:32")
    A.label(f"{name}_end")
    if asmlib.INSTR:
        A("s_mov_b64 exec, -1")
        A("s_waitcnt vmcnt(0)")
    ts_mark(A, 2, name, 1)
    A.label(f"{name}_exit")
    A("s_endpgm")
    return NV, 102
```

```python
from asmlib import *
import asmlib
from k1 import *
from gemm import Gemm
from k3 import ln_rows
import k2

def g_role(A, name, kidx, gprio=3, prefetch=True, mode=0, cprio=0, zpf=False, lprio=None, nodma=False):
    A("s_sub_u32 s2, s2, 256")
    ts_begin(A)
    A("s_load_dwordx4 s[40:43], s[0:1], 40")
    A("s_load_dwordx2 s[44:45], s[0:1], 80")
    A("s_load_dwordx2 s[46:47], s[0:1], 88")
    if gprio: A(f"s_setprio {gprio}")
    A("v_and_b32 v1, 63, v0")
    A("v_lshrrev_b32 v2, 6, v0")
    A("s_and_b32 s48, s2, 7")
    A("v_readfirstlane_b32 s20, v2")
    A("s_lshr_b32 s49, s2, 3")
    A("s_lshl_b32 s23, s48, 2")
    A("s_and_b32 s50, s49, 3")
    A("s_add_u32 s23, s23, s50")
    A("s_lshr_b32 s24, s49, 2")
    A("s_lshl_b32 s25, s24, 2")
    A("s_mul_i32 s26, s24, 3")
    A("s_add_u32 s26, s26, 3")
    A("s_cmp_lt_u32 s24, 3")
    A("s_cselect_b32 s25, s25, s26")
    A("s_cselect_b32 s26, 4, 3")
    A("s_waitcnt lgkmcnt(0)")
    srd(A, 8, 46, 47, WS_Z, Z_SIZE)
    srd(A, 16, 46, 47, WS_Z2N, Z2N_SIZE)
    A("s_lshl_b32 s21, s2, 3")
    A("s_add_u32 s21, s21, s20")
    ln_rows(A, 21, 1, 8, 16, 1, 2, 52, store_flags="sc1")
    A("s_waitcnt vmcnt(0)")
    A("s_barrier")
    srd(A, 12, 44, 45, 0, 256)
    A("s_cmp_lg_u32 s20, 0")
    A(f"s_cbranch_scc1 {name}_g_noflag")
    A("s_lshr_b32 s28, s2, 3")
    A("s_lshl_b32 s28, s28, 2")
    A("v_mov_b32 v2, s28")
    A("v_mov_b32 v3, 1")
    A("s_mov_b64 exec, 1")
    A("buffer_atomic_add v3, v2, s[12:15], 0 offen sc1")
    A("s_mov_b64 exec, -1")
    A.label(f"{name}_g_noflag")
    srd(A, 8, 40, 41, 0, 2048 * 4096)
    if prefetch:
        A("s_lshl_b32 s27, s23, 6")
        A("s_lshl_b32 s28, s20, 3")
        A("s_add_u32 s27, s27, s28")
        A("v_lshrrev_b32 v2, 5, v1")
        A("v_add_u32 v2, s27, v2")
        A("v_lshlrev_b32 v2, 12, v2")
        A("v_and_b32 v3, 31, v1")
        A("v_lshl_add_u32 v2, v3, 4, v2")
        A("s_lshl_b32 s28, s24, 9")
        A("v_add_u32 v2, s28, v2")
        for i in range(4):
            A(f"s_mov_b32 s28, {i*2*4096}")
            A(f"buffer_load_dwordx4 v[{116+4*(i%2)}:{119+4*(i%2)}], v2, s[8:11], s28 offen")
    ts_mark(A, 0, name, kidx + 1)
    if mode == 1:
        A(f"s_branch {name}_exit")
    G = Gemm(A, 4, 64, 2, 2, 1, 2, 3, 0, 10, 60, 21, 22, 23, 1)
    G.sW = 21; G.sWM = 22; G.sWN = 29
    A("s_and_b32 s21, s20, 3")
    A("s_lshr_b32 s22, s21, 1")
    A("s_and_b32 s29, s21, 1")
    A("s_lshl_b32 s27, s23, 6")
    A("s_lshl_b32 s28, s25, 6")
    A("s_cmp_ge_u32 s20, 4")
    A(f"s_cbranch_scc0 {name}_g_cons")
    if lprio is not None: A(f"s_setprio {lprio}")
    G.setup_dma(27, 4096, 28, 1728)
    G.init_slots()
    A("s_cmp_lg_u32 s20, 4")
    A(f"s_cbranch_scc1 {name}_g_nopoll")
    A("v_lshlrev_b32 v2, 2, v1")
    A("s_mov_b32 s30, -1")
    A("s_mov_b32 s31, 0")
    A("s_mov_b64 exec, s[30:31]")
    A("s_movk_i32 s32, 0x4000")
    A.label(f"{name}_g_poll")
    A("buffer_load_dword v3, v2, s[12:15], 0 offen sc1")
    A("s_waitcnt vmcnt(0)")
    A("v_cmp_le_u32 vcc, 8, v3")
    A("s_nop 3")
    A("s_cmp_eq_u32 vcc_lo, -1")
    A(f"s_cbranch_scc1 {name}_g_polled")
    A("s_sub_u32 s32, s32, 1")
    A("s_cmp_eq_u32 s32, 0")
    A(f"s_cbranch_scc1 {name}_g_polled")
    A("s_sleep 2")
    A(f"s_branch {name}_g_poll")
    A.label(f"{name}_g_polled")
    A("s_mov_b64 exec, -1")
    A("buffer_inv sc1")
    A("s_waitcnt vmcnt(0)")
    A.label(f"{name}_g_nopoll")
    A("s_barrier")
    srd(A, 12, 46, 47, WS_Z2N, Z2N_SIZE)
    A(f"s_mov_b32 s{G.sOffA}, 0")
    A(f"s_mov_b32 s{G.sOffB}, 0")
    D = 2; n = 32
    def adv():
        A(f"s_add_u32 s{G.sOffA}, s{G.sOffA}, 128")
        A(f"s_add_u32 s{G.sOffB}, s{G.sOffB}, {64*1728}")
    A("s_waitcnt vmcnt(0)")
    for i in range(D):
        G.issue(i, 8, 12); adv()
    sCnt = G.send
    A(f"s_mov_b32 s{sCnt}, {n-D}")
    A.label(f"{name}_g_lloop")
    A(f"s_waitcnt vmcnt({(D-1)*G.ndma})")
    A("s_barrier")
    if not nodma: G.issue(D, 8, 12)
    else: A("s_sleep 8")
    adv()
    G.rotate()
    A(f"s_sub_u32 s{sCnt}, s{sCnt}, 1")
    A(f"s_cmp_lg_u32 s{sCnt}, 0")
    A(f"s_cbranch_scc1 {name}_g_lloop")
    for j in range(D):
        A(f"s_waitcnt vmcnt({(D-1-j)*G.ndma})")
        A("s_barrier")
    A(f"s_branch {name}_exit")
    A.label(f"{name}_g_cons")
    G.init_slots()
    G.setup_reads()
    vAcc = (G.vend + 3) // 4 * 4
    def acc(nb, mb): return vAcc + 16 * nb
    for i in range(32):
        A(f"v_mov_b32 v{vAcc+i}, 0")
    vE = vAcc + 32
    srd(A, 8, 46, 47, WS_Z, Z_SIZE)
    srd(A, 12, 42, 43, 0, 4096)
    srd(A, 16, 46, 47, WS_U, U_SIZE)
    A("v_and_b32 v2, 31, v1")
    A("v_lshrrev_b32 v3, 5, v1")
    A("s_lshl_b32 s33, s22, 5")
    A("s_add_u32 s33, s33, s27")
    A("v_add_u32 v2, s33, v2")
    A("v_lshlrev_b32 v4, 1, v2")
    A(f"buffer_load_ushort v{vE}, v4, s[12:15], 0 offen")
    A("s_lshl_b32 s30, s29, 1")
    A("s_add_u32 s31, s30, s25")
    A("s_lshl_b32 s31, s31, 6")
    A("s_movk_i32 s32, 3456")
    A("v_mul_lo_u32 v5, v2, s32")
    A("v_lshl_add_u32 v5, v3, 4, v5")
    A("v_add_u32 v5, s31, v5")
    A("s_movk_i32 s32, 1728")
    A("v_mul_lo_u32 v6, v2, s32")
    A("v_lshl_add_u32 v6, v3, 4, v6")
    A("v_add_u32 v6, s31, v6")
    for nb in range(2):
        for s in range(2):
            A(f"buffer_load_dwordx4 {vr(vE+4+8*nb+4*s,4)}, v5, s[8:11], 0 offen offset:{nb*64+s*32}")
    A("s_barrier")
    if zpf:
        srd(A, 36, 46, 47, WS_Z2N, Z2N_SIZE)
        A("s_lshr_b32 s33, s2, 3")
        A("s_mul_i32 s33, s33, 110592")
        A("s_mul_i32 s34, s20, 27648")
        A("s_add_u32 s33, s33, s34")
        A("v_lshlrev_b32 v7, 4, v1")
        A("v_add_u32 v7, s33, v7")
        for i in range(27):
            A(f"s_mov_b32 s34, {i*1024}")
            A(f"buffer_load_dwordx4 v[{116+4*(i%2)}:{119+4*(i%2)}], v7, s[36:39], s34 offen")
    ts_mark(A, 1, name, kidx + 1)
    A(f"s_mov_b32 s{G.send}, {n}")
    A.lines.append(".p2align 6")
    A.label(f"{name}_g_cloop")
    A("s_barrier")
    G.cur_addrs()
    if mode == 2:
        pass
    elif mode == 3:
        for kk in range(4): G.reads(kk, kk % 2)
        A("s_waitcnt lgkmcnt(0)")
    elif mode == 4:
        for kk in range(4): G.mfmas(kk % 2, acc)
    else:
        if cprio: A(f"s_setprio {cprio}")
        G.compute_step(acc)
        if cprio: A("s_setprio 0")
    G.rotate()
    A(f"s_sub_u32 s{G.send}, s{G.send}, 1")
    A(f"s_cmp_lg_u32 s{G.send}, 0")
    A(f"s_cbranch_scc1 {name}_g_cloop")
    ts_mark(A, 2, name, kidx + 1)
    A("s_waitcnt vmcnt(0)")
    A(f"v_lshlrev_b32 v{vE}, 16, v{vE}")
    A("s_nop 7")
    for nb in range(2):
        lab = A.newlabel(f"{name}_skip")
        A(f"s_add_u32 s33, s30, {nb}")
        A("s_cmp_ge_u32 s33, s26")
        A(f"s_cbranch_scc1 {lab}")
        for s in range(2):
            a = acc(nb, 0) + 8 * s
            z = vE + 4 + 8 * nb + 4 * s
            t = vE + 20
            for i in range(4):
                A(f"v_lshlrev_b32 v{t+2*i}, 16, v{z+i}")
                A(f"v_and_b32 v{t+2*i+1}, 0xffff0000, v{z+i}")
            for i in range(8):
                A(f"v_add_f32 v{a+i}, v{a+i}, v{vE}")
                A(f"v_mul_f32 v{a+i}, v{a+i}, v{t+i}")
            for i in range(4):
                A(f"v_cvt_pk_bf16_f32 v{z+i}, v{a+2*i}, v{a+2*i+1}")
            A(f"buffer_store_dwordx4 {vr(z,4)}, v6, s[16:19], 0 offen offset:{nb*64+s*32}")
        A.label(lab)
    if asmlib.INSTR:
        A("s_waitcnt vmcnt(0)")
    ts_mark(A, 3, name, kidx + 1)
    A(f"s_branch {name}_exit")

def gen_fused(A, name="k2_kernel", gprio=3, prefetch=True, mode=0, swap=False, cprio=0, zpf=False, lprio=None, nodma=False, **kw):
    kernel_begin(A, name)
    A("s_cmp_ge_u32 s2, 512")
    A(f"s_cbranch_scc1 {name}_gexit")
    if swap:
        A("s_xor_b32 s2, s2, 256")
    A("s_cmp_ge_u32 s2, 256")
    A(f"s_cbranch_scc1 {name}_grole")
    nv, ns = k2.gen_attn(A, name, body_only=True, **kw)
    A.label(f"{name}_grole")
    g_role(A, name, 1, gprio, prefetch, mode, cprio, zpf, lprio, nodma)
    A.label(f"{name}_gexit")
    A("s_endpgm")
    return 128, 102
```

```python
from asmlib import *
import asmlib
from k1 import *
from gemm import Gemm
from k3 import ln_rows
import k2

def gate_rows(A, sRow0, vLane, srdX, srdW, srdO, v0):
    vW = v0 + 10; vX = v0 + 30; vS = v0 + 6
    A(f"v_lshrrev_b32 v{v0}, 4, v{vLane}")
    A(f"v_and_b32 v{v0+1}, 15, v{vLane}")
    A(f"v_mul_u32_u24 v{v0+1}, 80, v{v0+1}")
    A(f"v_add_u32 v{v0+2}, s{sRow0}, v{v0}")
    A(f"s_movk_i32 s54, 1280")
    A(f"v_mul_lo_u32 v{v0+3}, v{v0+2}, s54")
    A(f"v_add_u32 v{v0+3}, v{v0+3}, v{v0+1}")
    for i in range(5):
        A(f"buffer_load_dwordx4 {vr(vW+4*i,4)}, v{v0+1}, s[{srdW}:{srdW+3}], 0 offen offset:{16*i}")
    for it in range(4):
        for i in range(5):
            A(f"buffer_load_dwordx4 {vr(vX+20*it+4*i,4)}, v{v0+3}, s[{srdX}:{srdX+3}], 0 offen offset:{16*i}")
        A(f"v_add_u32 v{v0+3}, {4*1280}, v{v0+3}")
    A("s_waitcnt vmcnt(0)")
    for it in range(4):
        A(f"v_mov_b32 v{vS+it}, 0")
        for i in range(20):
            A(f"v_dot2_f32_bf16 v{vS+it}, v{vX+20*it+i}, v{vW+i}, v{vS+it}")
    A("s_nop 3")
    for sh in (8, 4, 2, 1):
        for it in range(4):
            A(f"v_add_f32_dpp v{vS+it}, v{vS+it}, v{vS+it} row_ror:{sh} row_mask:0xf bank_mask:0xf")
        A("s_nop 1")
    for it in range(4):
        A(f"v_mul_f32 v{vS+it}, {fhex(-LOG2E)}, v{vS+it}")
    for it in range(4):
        A(f"v_exp_f32 v{vS+it}, v{vS+it}")
    A("s_nop 0")
    for it in range(4):
        A(f"v_add_f32 v{vS+it}, 1.0, v{vS+it}")
    for it in range(4):
        A(f"v_rcp_f32 v{vS+it}, v{vS+it}")
    A(f"v_lshlrev_b32 v{v0+2}, 2, v{v0+2}")
    A(f"v_and_b32 v{v0+1}, 15, v{vLane}")
    A(f"v_cmp_eq_u32 vcc, 0, v{v0+1}")
    A("s_and_saveexec_b64 s[52:53], vcc")
    for it in range(4):
        A(f"buffer_store_dword v{vS+it}, v{v0+2}, s[{srdO}:{srdO+3}], 0 offen offset:{16*it}")
    A("s_mov_b64 exec, s[52:53]")

def g_role(A, name, kidx, lnprio=2, lprio=2, cprio=1, wpf=True, paced=None, eprio=1, zpace='s_sleep 12', rot=True, zsrc_pitch=3456, zsrc_off=1728, do_gate=True):
    A("s_sub_u32 s2, s2, 256")
    ts_begin(A)
    A("s_load_dwordx2 s[36:37], s[0:1], 0")
    A("s_load_dwordx4 s[40:43], s[0:1], 32")
    A("s_load_dwordx2 s[38:39], s[0:1], 48")
    A("s_load_dwordx2 s[44:45], s[0:1], 80")
    A("s_load_dwordx2 s[46:47], s[0:1], 88")
    A("s_load_dwordx2 s[34:35], s[0:1], 64")
    if lnprio: A(f"s_setprio {lnprio}")
    A("v_and_b32 v1, 63, v0")
    A("v_lshrrev_b32 v2, 6, v0")
    A("s_and_b32 s48, s2, 7")
    A("v_readfirstlane_b32 s20, v2")
    A("s_lshr_b32 s49, s2, 3")
    A("s_lshl_b32 s23, s48, 2")
    A("s_and_b32 s50, s49, 3")
    A("s_add_u32 s23, s23, s50")
    A("s_lshr_b32 s24, s49, 2")
    A("s_waitcnt lgkmcnt(0)")
    if wpf:
        A("s_cmp_lg_u32 s24, 7")
        A(f"s_cbranch_scc1 {name}_g_nop1")
        A("s_and_b32 s50, s49, 3")
        A("s_lshl_b32 s51, s50, 3")
        A("s_add_u32 s51, s51, s20")
        srd(A, 8, 40, 41, 0, 640 * 3456)
        A("v_mul_u32_u24 v2, 4682, v1")
        A("v_lshrrev_b32 v2, 16, v2")
        A("v_mul_u32_u24 v3, 14, v2")
        A("v_sub_u32 v3, v1, v3")
        A("v_lshlrev_b32 v3, 7, v3")
        A("s_lshl_b32 s52, s51, 2")
        A("v_add_u32 v2, s52, v2")
        A("s_movk_i32 s53, 3456")
        A("v_mul_lo_u32 v2, v2, s53")
        A("v_add_u32 v2, v2, v3")
        A("v_cmp_gt_u32 vcc, 56, v1")
        A("s_and_saveexec_b64 s[54:55], vcc")
        for i in range(5):
            A(f"s_mov_b32 s53, {i*128*3456}")
            A(f"buffer_load_dword v{100+i}, v2, s[8:11], s53 offen sc1")
        A("s_mov_b64 exec, s[54:55]")
        srd(A, 8, 36, 37, 0, 2048 * 1280)
        A("v_mul_u32_u24 v2, 6554, v1")
        A("v_lshrrev_b32 v2, 16, v2")
        A("v_mul_u32_u24 v3, 10, v2")
        A("v_sub_u32 v3, v1, v3")
        A("v_lshlrev_b32 v3, 7, v3")
        A("s_lshl_b32 s52, s48, 8")
        A("s_lshl_b32 s53, s51, 3")
        A("s_add_u32 s52, s52, s53")
        A("v_add_u32 v2, s52, v2")
        A("s_movk_i32 s53, 1280")
        A("v_mul_lo_u32 v2, v2, s53")
        A("v_add_u32 v2, v2, v3")
        A("v_cmp_gt_u32 vcc, 40, v1")
        A("s_and_saveexec_b64 s[54:55], vcc")
        for i in range(2):
            A(f"s_mov_b32 s53, {i*4*1280}")
            A(f"buffer_load_dword v{106+i}, v2, s[8:11], s53 offen sc1")
        A("s_mov_b64 exec, s[54:55]")
        srd(A, 8, 42, 43, 0, 2048 * 4096)
        A("v_lshrrev_b32 v2, 5, v1")
        A("s_lshl_b32 s52, s48, 8")
        A("s_lshl_b32 s53, s51, 3")
        A("s_add_u32 s52, s52, s53")
        A("v_add_u32 v2, s52, v2")
        A("v_lshlrev_b32 v2, 12, v2")
        A("v_and_b32 v3, 31, v1")
        A("v_lshl_add_u32 v2, v3, 7, v2")
        for i in range(4):
            A(f"s_mov_b32 s53, {i*2*4096}")
            A(f"buffer_load_dword v{108+i}, v2, s[8:11], s53 offen sc1")
        A.label(f"{name}_g_nop1")
    srd(A, 8, 46, 47, WS_Z, Z_SIZE)
    srd(A, 16, 46, 47, WS_Z2N, Z2N_SIZE)
    A("s_lshl_b32 s21, s2, 3")
    A("s_add_u32 s21, s21, s20")
    ln_rows(A, 21, 1, 8, 16, 1, 2, 52, store_flags="sc1")
    A("s_waitcnt vmcnt(0)")
    A("s_setprio 0")
    A("s_barrier")
    srd(A, 12, 46, 47, WS_FLAG, FLAG_SIZE)
    A("s_cmp_lg_u32 s20, 0")
    A(f"s_cbranch_scc1 {name}_g_noflag")
    A("s_lshr_b32 s28, s2, 3")
    A("s_lshl_b32 s28, s28, 7")
    A("v_mov_b32 v2, s28")
    A("v_mov_b32 v3, 1")
    A("s_mov_b64 exec, 1")
    A("buffer_atomic_add v3, v2, s[12:15], 0 offen sc1")
    A("s_mov_b64 exec, -1")
    A.label(f"{name}_g_noflag")
    ts_mark(A, 0, name, kidx + 1)
    A("s_cmp_lg_u32 s24, 7")
    A(f"s_cbranch_scc1 {name}_g_gemm")
    if wpf:
        A("s_and_b32 s50, s49, 3")
        A("s_lshl_b32 s51, s50, 3")
        A("s_add_u32 s51, s51, s20")
        A("v_lshlrev_b32 v2, 7, v1")
        A("s_mov_b32 s30, -1")
        A("s_mov_b32 s31, 0")
        A("s_mov_b64 exec, s[30:31]")
        A("s_movk_i32 s32, 0x4000")
        A.label(f"{name}_g_spoll")
        A("buffer_load_dword v3, v2, s[12:15], 0 offen sc1")
        A("s_waitcnt vmcnt(0)")
        A("v_cmp_le_u32 vcc, 8, v3")
        A("s_nop 3")
        A("s_cmp_eq_u32 vcc_lo, -1")
        A(f"s_cbranch_scc1 {name}_g_spolled")
        A("s_sub_u32 s32, s32, 1")
        A("s_cmp_eq_u32 s32, 0")
        A(f"s_cbranch_scc1 {name}_g_spolled")
        A("s_sleep 4")
        A(f"s_branch {name}_g_spoll")
        A.label(f"{name}_g_spolled")
        A("s_mov_b64 exec, -1")
        srd(A, 8, 46, 47, WS_Z2N, Z2N_SIZE)
        A("v_and_b32 v2, 31, v1")
        A("v_cmp_le_u32 vcc, 14, v2")
        A("v_cndmask_b32 v3, 0, 1, vcc")
        A("v_mul_u32_u24 v4, 14, v3")
        A("v_sub_u32 v4, v2, v4")
        A("v_lshrrev_b32 v5, 5, v1")
        A("v_lshlrev_b32 v5, 6, v5")
        A("v_add_u32 v5, v5, v3")
        A("s_lshl_b32 s52, s51, 1")
        A("v_add_u32 v5, s52, v5")
        A(f"s_movk_i32 s53, {Z2N_PITCH}")
        A("v_mul_lo_u32 v5, v5, s53")
        A("v_lshl_add_u32 v5, v4, 7, v5")
        A("v_cmp_gt_u32 vcc, 28, v2")
        A("s_and_saveexec_b64 s[54:55], vcc")
        for i in range(16):
            A(f"s_mov_b32 s53, {i*128*Z2N_PITCH}")
            A(f"buffer_load_dword v{100+(i%8)}, v5, s[8:11], s53 offen sc1")
            if zpace and i >= 2: A(zpace)
        A("s_mov_b64 exec, s[54:55]")
    if do_gate:
        A("s_cmp_ge_u32 s20, 4")
        A(f"s_cbranch_scc1 {name}_exit")
        srd(A, 8, 36, 37, 0, 2048 * 1280)
        srd(A, 12, 34, 35, 0, 1280)
        srd(A, 16, 46, 47, WS_GATE, GATE_SIZE)
        A("s_lshl_b32 s21, s23, 6")
        A("s_lshl_b32 s22, s20, 4")
        A("s_add_u32 s21, s21, s22")
        gate_rows(A, 21, 1, 8, 12, 16, 2)
    A(f"s_branch {name}_exit")
    A.label(f"{name}_g_gemm")
    G = Gemm(A, 4, 64, 2, 2, 1, 2, 3, 0, 10, 60, 21, 22, 29, 1)
    A("s_and_b32 s21, s20, 3")
    A("s_lshr_b32 s22, s21, 1")
    A("s_and_b32 s29, s21, 1")
    A("s_lshl_b32 s27, s23, 6")
    A("s_lshl_b32 s28, s24, 8")
    G.init_slots()
    sOff = G.sOffA
    sK = G.sOffB
    NZ, NS = 10, 32
    if rot:
        A("s_and_b32 s72, s23, 3")
        A("s_mul_i32 s70, s72, 5")
        A("s_lshr_b32 s70, s70, 1")
        A("s_mul_i32 s73, s24, 10")
        A("s_mul_i32 s73, s73, 9363")
        A("s_lshr_b32 s73, s73, 16")
        A("s_add_u32 s70, s70, s73")
        A("s_cmp_ge_u32 s70, 10")
        A("s_cselect_b32 s73, 10, 0")
        A("s_sub_u32 s70, s70, s73")
        A("s_lshl_b32 s71, s72, 3")
        A("s_mul_i32 s73, s24, 32")
        A("s_mul_i32 s73, s73, 9363")
        A("s_lshr_b32 s73, s73, 16")
        A("s_add_u32 s71, s71, s73")
        A("s_and_b32 s71, s71, 31")
    else:
        A("s_mov_b32 s70, 0")
        A("s_mov_b32 s71, 0")
    def set_k(start_s, stride):
        A(f"s_mov_b32 s{sK}, s{start_s}")
        A(f"s_mul_i32 s{sOff}, s{sK}, {stride}")
    def adv_k(n, stride):
        A(f"s_add_u32 s{sK}, s{sK}, 1")
        A(f"s_cmp_eq_u32 s{sK}, {n}")
        A(f"s_cselect_b32 s{sK}, 0, s{sK}")
        A(f"s_mul_i32 s{sOff}, s{sK}, {stride}")
    A("s_cmp_ge_u32 s20, 4")
    A(f"s_cbranch_scc0 {name}_g_cons")
    vB1, vB2 = 10, 14
    G.setup_dma_b(vB1, 28, 3456)
    G.setup_dma_b(vB2, 28, Z2N_PITCH)
    srd(A, 4, 40, 41, 0, 640 * 3456)
    srd(A, 8, 46, 47, WS_Z2N, Z2N_SIZE)
    if lprio: A(f"s_setprio {lprio}")
    def lstep(wait, issue_fn, pre=None):
        A(f"s_waitcnt vmcnt({wait})")
        if pre: pre()
        if lprio: A("s_setprio 0")
        A("s_barrier")
        if lprio: A(f"s_setprio {lprio}")
        if issue_fn: issue_fn()
        G.rotate()
    def iss1():
        G.issue_b(2, 4, vB1, sOff); adv_k(NZ, 64*3456)
    def iss2():
        G.issue_b(2, 8, vB2, sOff); adv_k(NS, 64*Z2N_PITCH)
    set_k(70, 64*3456)
    for i in range(2):
        G.issue_b(i, 4, vB1, sOff); adv_k(NZ, 64*3456)
    sCnt = G.send
    A(f"s_mov_b32 s{sCnt}, {NZ-2}")
    A.label(f"{name}_g_l1")
    lstep(4, iss1)
    A(f"s_sub_u32 s{sCnt}, s{sCnt}, 1")
    A(f"s_cmp_lg_u32 s{sCnt}, 0")
    A(f"s_cbranch_scc1 {name}_g_l1")
    def poll():
        A("s_cmp_lg_u32 s20, 4")
        A(f"s_cbranch_scc1 {name}_g_nopoll")
        A("v_lshlrev_b32 v2, 7, v1")
        A("s_mov_b32 s30, -1")
        A("s_mov_b32 s31, 0")
        A("s_mov_b64 exec, s[30:31]")
        A("s_movk_i32 s32, 0x4000")
        A.label(f"{name}_g_poll")
        A("buffer_load_dword v3, v2, s[12:15], 0 offen sc1")
        A("s_waitcnt vmcnt(0)")
        A("v_cmp_le_u32 vcc, 8, v3")
        A("s_nop 3")
        A("s_cmp_eq_u32 vcc_lo, -1")
        A(f"s_cbranch_scc1 {name}_g_polled")
        A("s_sub_u32 s32, s32, 1")
        A("s_cmp_eq_u32 s32, 0")
        A(f"s_cbranch_scc1 {name}_g_polled")
        A("s_sleep 1")
        A(f"s_branch {name}_g_poll")
        A.label(f"{name}_g_polled")
        A("s_mov_b64 exec, -1")
        A("buffer_inv sc1")
        A("s_waitcnt vmcnt(0)")
        A.label(f"{name}_g_nopoll")
    set_k(71, 64*Z2N_PITCH)
    lstep(4, iss2, pre=poll)
    lstep(4, iss2)
    A(f"s_mov_b32 s{sCnt}, {NS-2}")
    A.label(f"{name}_g_l2")
    lstep(4, iss2)
    A(f"s_sub_u32 s{sCnt}, s{sCnt}, 1")
    A(f"s_cmp_lg_u32 s{sCnt}, 0")
    A(f"s_cbranch_scc1 {name}_g_l2")
    lstep(4, None)
    lstep(0, None)
    A(f"s_branch {name}_exit")
    A.label(f"{name}_g_cons")
    vA1, vA2 = 10, 12
    G.setup_dma_a(vA1, 27, 1280)
    G.setup_dma_a(vA2, 27, 4096)
    srd(A, 4, 36, 37, 0, 2048 * 1280)
    srd(A, 8, 42, 43, 0, 2048 * 4096)
    set_k(70, 128)
    for i in range(2):
        G.issue_a(i, 4, vA1, sOff); adv_k(NZ, 128)
    G.setup_reads()
    vAcc = (G.vend + 3) // 4 * 4
    def acc1(nb, mb): return vAcc + 16 * nb
    def acc2(nb, mb): return vAcc + 32 + 16 * nb
    for i in range(64):
        A(f"v_mov_b32 v{vAcc+i}, 0")
    def cstep(acc, wait, issue_fn):
        A(f"s_waitcnt vmcnt({wait})")
        A("s_barrier")
        if paced is not None:
            G.cur_addrs()
            G.compute_step_paced(acc, issue_fn, prio=cprio, pace=paced)
        else:
            if cprio: A(f"s_setprio {cprio}")
            G.cur_addrs()
            G.compute_step(acc, issue_fn)
            if cprio: A("s_setprio 0")
        G.rotate()
    def ia1():
        G.issue_a(2, 4, vA1, sOff); adv_k(NZ, 128)
    def ia2():
        G.issue_a(2, 8, vA2, sOff); adv_k(NS, 128)
    npf = 0
    cstep(acc1, 2 + npf, ia1)
    cstep(acc1, npf + 2, ia1)
    A(f"s_mov_b32 s{G.send}, {NZ-4}")
    A.lines.append(".p2align 6")
    A.label(f"{name}_g_c1")
    cstep(acc1, 2, ia1)
    A(f"s_sub_u32 s{G.send}, s{G.send}, 1")
    A(f"s_cmp_lg_u32 s{G.send}, 0")
    A(f"s_cbranch_scc1 {name}_g_c1")
    set_k(71, 128)
    cstep(acc1, 2, ia2)
    cstep(acc1, 2, ia2)
    ts_mark(A, 1, name, kidx + 1)
    A(f"s_mov_b32 s{G.send}, {NS-2}")
    A.lines.append(".p2align 6")
    A.label(f"{name}_g_c2")
    cstep(acc2, 2, ia2)
    A(f"s_sub_u32 s{G.send}, s{G.send}, 1")
    A(f"s_cmp_lg_u32 s{G.send}, 0")
    A(f"s_cbranch_scc1 {name}_g_c2")
    vE = vAcc + 64
    srd(A, 12, 38, 39, 0, 4096)
    srd(A, 16, 46, 47, WS_U, U_SIZE)
    A("v_and_b32 v2, 31, v1")
    A("v_lshrrev_b32 v3, 5, v1")
    A("s_lshl_b32 s33, s22, 5")
    A("s_add_u32 s33, s33, s27")
    A("v_add_u32 v2, s33, v2")
    A("v_lshlrev_b32 v4, 1, v2")
    cstep(acc2, 2, None)
    A(f"buffer_load_ushort v{vE}, v4, s[12:15], 0 offen")
    cstep(acc2, 1, None)
    ts_mark(A, 2, name, kidx + 1)
    if eprio: A(f"s_setprio {eprio}")
    A("s_lshl_b32 s31, s29, 7")
    A("s_add_u32 s31, s31, s28")
    A(f"s_movk_i32 s32, {U_PITCH}")
    A("v_mul_lo_u32 v6, v2, s32")
    A("v_lshl_add_u32 v6, v3, 4, v6")
    A("v_add_u32 v6, s31, v6")
    vC = 10
    A(f"v_mov_b32 v{vC}, {fhex(GC1)}")
    A(f"v_mov_b32 v{vC+1}, {fhex(GC1)}")
    A(f"v_mov_b32 v{vC+2}, {fhex(GC0)}")
    A(f"v_mov_b32 v{vC+3}, {fhex(GC0)}")
    A(f"v_mov_b32 v{vC+4}, 1.0")
    A(f"v_mov_b32 v{vC+5}, 1.0")
    A("s_waitcnt vmcnt(0)")
    A(f"v_lshlrev_b32 v{vE}, 16, v{vE}")
    A("s_nop 7")
    vT = G.vF
    for nb in range(2):
        a1 = acc1(nb, 0); a2 = acc2(nb, 0)
        gelu_pk(A, [a1 + 2 * i for i in range(8)], vT, (vC, vC + 2, vC + 4))
        for i in range(16):
            A(f"v_add_f32 v{a2+i}, v{a2+i}, v{vE}")
        for i in range(8):
            A(f"v_pk_mul_f32 {vr(a1+2*i,2)}, {vr(a1+2*i,2)}, {vr(a2+2*i,2)}")
        if nb == 1:
            lab = A.newlabel(f"{name}_nz")
            A("s_cmp_eq_u32 s24, 6")
            A("s_cselect_b32 s33, s29, 0")
            A("s_cmp_eq_u32 s33, 0")
            A(f"s_cbranch_scc1 {lab}")
            for i in range(16):
                A(f"v_mov_b32 v{a1+i}, 0")
            A.label(lab)
        for s in range(2):
            d = vT + 16 + 4 * s
            for i in range(4):
                A(f"v_cvt_pk_bf16_f32 v{d+i}, v{a1+8*s+2*i}, v{a1+8*s+2*i+1}")
            A(f"buffer_store_dwordx4 {vr(d,4)}, v6, s[16:19], 0 offen offset:{nb*64+s*32}")
        A("s_nop 1")
    if asmlib.INSTR:
        A("s_waitcnt vmcnt(0)")
    ts_mark(A, 3, name, kidx + 1)
    A(f"s_branch {name}_exit")

def gen_fused(A, name="k2_kernel", lnprio=2, lprio=2, cprio=1, wpf=True, paced=None, eprio=1, zpace='s_sleep 12', rot=True, noa=False, **kw):
    kernel_begin(A, name)
    A("s_cmp_ge_u32 s2, 512")
    A(f"s_cbranch_scc1 {name}_gexit")
    A("s_cmp_ge_u32 s2, 256")
    A(f"s_cbranch_scc1 {name}_grole")
    if noa: A("s_endpgm")
    nv, ns = k2.gen_attn(A, name, body_only=True, **kw)
    A.label(f"{name}_grole")
    g_role(A, name, 1, lnprio, lprio, cprio, wpf, paced, eprio, zpace, rot)
    A.label(f"{name}_gexit")
    A("s_endpgm")
    return 128, 102
```

```python
from asmlib import *
import asmlib
from k1 import *
from gemm import Gemm
from k3 import wave_allreduce_add
from k2g import gate_rows
import k2

def ln_row_tiled(A, sRow, srdZ, srdOut, vLane, v0, sT, in_pitch, in_off, store_flags="sc1"):
    vIn = v0; vOut = v0 + 1; vT = v0 + 2
    vRaw = (v0 + 4 + 3) // 4 * 4
    vX = vRaw + 8
    A(f"s_mul_i32 s{sT}, s{sRow}, {in_pitch}")
    if in_off: A(f"s_add_u32 s{sT}, s{sT}, {in_off}")
    A(f"v_lshlrev_b32 v{vT}, 4, v{vLane}")
    A(f"v_add_u32 v{vIn}, s{sT}, v{vT}")
    A(f"v_cmp_gt_u32 s[{sT+2}:{sT+3}], 44, v{vLane}")
    for i in range(4):
        A(f"v_mov_b32 v{vRaw+4+i}, 0")
    A(f"buffer_load_dwordx4 {vr(vRaw,4)}, v{vIn}, s[{srdZ}:{srdZ+3}], 0 offen")
    A(f"s_mov_b64 s[{sT+4}:{sT+5}], exec")
    A(f"s_mov_b64 exec, s[{sT+2}:{sT+3}]")
    A(f"buffer_load_dwordx4 {vr(vRaw+4,4)}, v{vIn}, s[{srdZ}:{srdZ+3}], 0 offen offset:1024")
    A(f"s_mov_b64 exec, s[{sT+4}:{sT+5}]")
    A(f"s_lshr_b32 s{sT}, s{sRow}, 6")
    A(f"s_lshl_b32 s{sT}, s{sT}, 14")
    A(f"s_and_b32 s{sT+1}, s{sRow}, 63")
    A(f"s_lshl_b32 s{sT+1}, s{sT+1}, 8")
    A(f"s_add_u32 s{sT}, s{sT}, s{sT+1}")
    A(f"s_and_b32 s{sT+1}, s{sRow}, 3")
    A(f"s_lshl_b32 s{sT+1}, s{sT+1}, 2")
    A(f"v_and_b32 v{vT}, 15, v{vLane}")
    A(f"v_xor_b32 v{vT}, s{sT+1}, v{vT}")
    A(f"v_lshlrev_b32 v{vT}, 4, v{vT}")
    A(f"v_lshrrev_b32 v{vT+1}, 4, v{vLane}")
    A(f"v_lshlrev_b32 v{vT+1}, 19, v{vT+1}")
    A(f"v_add_u32 v{vT}, v{vT}, v{vT+1}")
    A(f"v_add_u32 v{vOut}, s{sT}, v{vT}")
    A("s_waitcnt vmcnt(0)")
    x = vX
    for i in range(8):
        A(f"v_lshlrev_b32 v{x+2*i}, 16, v{vRaw+i}")
        A(f"v_and_b32 v{x+2*i+1}, 0xffff0000, v{vRaw+i}")
    s = vRaw
    A(f"v_add_f32 v{s}, v{x}, v{x+1}")
    A(f"v_add_f32 v{s+1}, v{x+2}, v{x+3}")
    for i in range(4, 16, 2):
        A(f"v_add_f32 v{s}, v{s}, v{x+i}")
        A(f"v_add_f32 v{s+1}, v{s+1}, v{x+i+1}")
    A(f"v_add_f32 v{s}, v{s}, v{s+1}")
    wave_allreduce_add(A, s, s + 1)
    A(f"v_mul_f32 v{s}, {fhex(1.0/864)}, v{s}")
    for i in range(16):
        A(f"v_sub_f32 v{x+i}, v{x+i}, v{s}")
    for i in range(8, 16):
        A(f"v_cndmask_b32 v{x+i}, 0, v{x+i}, s[{sT+2}:{sT+3}]")
    A(f"v_mul_f32 v{s}, v{x}, v{x}")
    A(f"v_mul_f32 v{s+1}, v{x+1}, v{x+1}")
    for i in range(2, 16, 2):
        A(f"v_fmac_f32 v{s}, v{x+i}, v{x+i}")
        A(f"v_fmac_f32 v{s+1}, v{x+i+1}, v{x+i+1}")
    A(f"v_add_f32 v{s}, v{s}, v{s+1}")
    wave_allreduce_add(A, s, s + 1)
    A(f"v_mov_b32 v{s+1}, {fhex(1e-5)}")
    A(f"v_fmac_f32 v{s+1}, {fhex(1.0/864)}, v{s}")
    A(f"v_rsq_f32 v{s+1}, v{s+1}")
    A("s_nop 0")
    for i in range(16):
        A(f"v_mul_f32 v{x+i}, v{x+i}, v{s+1}")
    for i in range(8):
        A(f"v_cvt_pk_bf16_f32 v{s+i}, v{x+2*i}, v{x+2*i+1}")
    A(f"buffer_store_dwordx4 {vr(vRaw,4)}, v{vOut}, s[{srdOut}:{srdOut+3}], 0 offen {store_flags}")
    A(f"s_mov_b64 exec, s[{sT+2}:{sT+3}]")
    A(f"s_mov_b32 s{sT}, {4*32*16384}")
    A(f"buffer_store_dwordx4 {vr(vRaw+4,4)}, v{vOut}, s[{srdOut}:{srdOut+3}], s{sT} offen {store_flags}")
    A(f"s_mov_b64 exec, s[{sT+4}:{sT+5}]")

def g_role(A, name, kidx, lnprio=2, lprio=1, cprio=1, eprio=1, zin_pitch=3456, zin_off=1728, zin_base=WS_Z, zin_size=Z_SIZE):
    NZ, NS, R = 10, 32, 4
    NT = NZ + NS
    SLOT = 24576
    A("s_sub_u32 s2, s2, 256")
    ts_begin(A)
    A("s_load_dwordx2 s[36:37], s[0:1], 0")
    A("s_load_dwordx4 s[40:43], s[0:1], 32")
    A("s_load_dwordx2 s[38:39], s[0:1], 48")
    A("s_load_dwordx2 s[44:45], s[0:1], 80")
    A("s_load_dwordx2 s[46:47], s[0:1], 88")
    A("s_load_dwordx2 s[34:35], s[0:1], 64")
    A("v_and_b32 v1, 63, v0")
    A("v_lshrrev_b32 v2, 6, v0")
    A("s_and_b32 s48, s2, 7")
    A("v_readfirstlane_b32 s20, v2")
    A("s_lshr_b32 s49, s2, 3")
    A("s_lshl_b32 s23, s48, 2")
    A("s_and_b32 s50, s49, 3")
    A("s_add_u32 s23, s23, s50")
    A("s_lshr_b32 s24, s49, 2")
    A("s_and_b32 s21, s20, 3")
    A("s_lshl_b32 s27, s23, 6")
    A("s_lshl_b32 s28, s24, 8")
    A("s_waitcnt lgkmcnt(0)")
    srd(A, 12, 46, 47, WS_FLAG, FLAG_SIZE)
    A("s_cmp_ge_u32 s20, 4")
    A(f"s_cbranch_scc0 {name}_g_cons")
    A("s_cmp_eq_u32 s24, 7")
    A(f"s_cbranch_scc1 {name}_exit")
    if lprio: A(f"s_setprio {lprio}")
    vA1, vA2, vB1, vB2, vWA, vWB, vPo, vPd = 112, 114, 116, 120, 121, 122, 123, 124
    vSt = 16
    def buf(b): return vSt + 24 * (b % R)
    srd(A, 4, 36, 37, 0, 2048 * 1280)
    srd(A, 8, 40, 41, 0, 640 * 3456)
    srd(A, 60, 42, 43, 0, 2048 * 4096)
    srd(A, 64, 46, 47, WS_Z2N, Z2N_SIZE)
    sOA, sOB = 69, 70
    A("v_lshrrev_b32 v2, 3, v1")
    A("v_and_b32 v3, 7, v1")
    A("s_lshl_b32 s29, s21, 4")
    A("s_add_u32 s29, s29, s27")
    A("v_add_u32 v4, s29, v2")
    A("v_lshrrev_b32 v5, 1, v2")
    for j in range(2):
        if j:
            A("v_or_b32 v6, 4, v5"); A("v_xor_b32 v6, v6, v3")
        else:
            A("v_xor_b32 v6, v5, v3")
        A("v_lshlrev_b32 v6, 4, v6")
        A(f"v_add_u32 v7, {8*j}, v4")
        A("s_movk_i32 s30, 1280")
        A("v_mul_lo_u32 v8, v7, s30")
        A(f"v_add_u32 v{vA1+j}, v8, v6")
        A("v_lshlrev_b32 v8, 12, v7")
        A(f"v_add_u32 v{vA2+j}, v8, v6")
    A("v_lshrrev_b32 v2, 4, v1")
    A("v_and_b32 v3, 15, v1")
    A("v_lshlrev_b32 v5, 2, v2")
    A("v_xor_b32 v3, v3, v5")
    A("s_lshl_b32 s29, s21, 4")
    A("v_add_u32 v4, s29, v2")
    A("s_movk_i32 s30, 3456")
    A("v_mul_lo_u32 v4, v4, s30")
    A("v_lshl_add_u32 v4, v3, 4, v4")
    A(f"v_add_u32 v{vB1}, s28, v4")
    for j in range(1, 4):
        A(f"v_add_u32 v{vB1+j}, {j*4*3456}, v{vB1}")
    A("s_lshl_b32 s29, s24, 19")
    A("s_lshl_b32 s30, s21, 12")
    A("s_add_u32 s29, s29, s30")
    A("v_lshlrev_b32 v2, 4, v1")
    A(f"v_add_u32 v{vB2}, s29, v2")
    A("s_lshl_b32 s29, s21, 11")
    A(f"v_add_u32 v{vWA}, s29, v2")
    A("s_add_u32 s30, s30, 8192")
    A(f"v_add_u32 v{vWB}, s30, v2")
    A(f"v_and_b32 v{vPo}, 31, v1")
    A(f"v_lshlrev_b32 v{vPo}, 7, v{vPo}")
    def loads1(stage):
        b = buf(stage)
        A(f"s_mov_b32 s{sOA}, {stage*128}")
        A(f"s_mov_b32 s{sOB}, {stage*64*3456}")
        for j in range(2):
            A(f"buffer_load_dwordx4 {vr(b+4*j,4)}, v{vA1+j}, s[4:7], s{sOA} offen")
        for j in range(4):
            A(f"buffer_load_dwordx4 {vr(b+8+4*j,4)}, v{vB1+j}, s[8:11], s{sOB} offen")
    def loads2(b):
        for j in range(2):
            A(f"buffer_load_dwordx4 {vr(b+4*j,4)}, v{vA2+j}, s[60:63], s{sOA} offen")
        for j in range(4):
            A(f"buffer_load_dwordx4 {vr(b+8+4*j,4)}, v{vB2}, s[64:67], s{sOB} offen offset:{j*1024} sc1")
        A(f"s_add_u32 s{sOA}, s{sOA}, 128")
        A(f"s_add_u32 s{sOB}, s{sOB}, 16384")
    def writes(i):
        b = buf(i); so = (i % 2) * SLOT
        for j in range(2):
            A(f"ds_write_b128 v{vWA}, {vr(b+4*j,4)} offset:{so + j*1024}")
        for j in range(4):
            A(f"ds_write_b128 v{vWB}, {vr(b+8+4*j,4)} offset:{so + j*1024}")
        A("s_waitcnt lgkmcnt(0)")
    def bar():
        if lprio: A("s_setprio 0")
        A("s_barrier")
        if lprio: A(f"s_setprio {lprio}")
    for st in range(R):
        loads1(st)
    extra = 0
    for i in range(6):
        younger = 18 + (1 if i >= 4 else 0)
        A(f"s_waitcnt vmcnt({younger})")
        writes(i)
        loads1(i + 4)
        if i == 3:
            A(f"buffer_load_dword v{vPd}, v{vPo}, s[12:15], 0 offen sc1")
        if i == 5:
            A("s_waitcnt vmcnt(12)")
            A(f"v_cmp_le_u32 vcc, 32, v{vPd}")
            A("s_nop 3")
            A("s_cmp_eq_u64 vcc, -1")
            A(f"s_cbranch_scc1 {name}_g_polled")
            A("s_movk_i32 s32, 0x4000")
            A.label(f"{name}_g_poll")
            A(f"buffer_load_dword v{vPd}, v{vPo}, s[12:15], 0 offen sc1")
            A("s_waitcnt vmcnt(0)")
            A(f"v_cmp_le_u32 vcc, 32, v{vPd}")
            A("s_nop 3")
            A("s_cmp_eq_u64 vcc, -1")
            A(f"s_cbranch_scc1 {name}_g_polled")
            A("s_sub_u32 s32, s32, 1")
            A("s_cmp_eq_u32 s32, 0")
            A(f"s_cbranch_scc1 {name}_g_polled")
            A("s_sleep 1")
            A(f"s_branch {name}_g_poll")
            A.label(f"{name}_g_polled")
        bar()
    A(f"s_mov_b32 s{sOA}, 0")
    A(f"s_mov_b32 s{sOB}, 0")
    A("s_mov_b32 s68, 8")
    A.label(f"{name}_g_lloop")
    for u in range(4):
        i = 6 + u
        A("s_waitcnt vmcnt(18)")
        writes(i)
        loads2(buf(i))
        bar()
    A("s_sub_u32 s68, s68, 1")
    A("s_cmp_lg_u32 s68, 0")
    A(f"s_cbranch_scc1 {name}_g_lloop")
    for i in range(38, 42):
        A(f"s_waitcnt vmcnt({(41-i)*6})")
        writes(i)
        bar()
    A(f"s_branch {name}_exit")
    A.label(f"{name}_g_cons")
    if lnprio: A(f"s_setprio {lnprio}")
    srd(A, 8, 46, 47, zin_base, zin_size)
    srd(A, 16, 46, 47, WS_Z2N, Z2N_SIZE)
    ln_two_rows(A, name, zin_pitch, zin_off)
    A("s_waitcnt vmcnt(0)")
    A("s_lshr_b32 s28, s2, 3")
    A("s_lshl_b32 s28, s28, 7")
    A("v_mov_b32 v2, s28")
    A("v_mov_b32 v3, 1")
    A("s_mov_b64 exec, 1")
    A("buffer_atomic_add v3, v2, s[12:15], 0 offen sc1")
    A("s_mov_b64 exec, -1")
    A.label(f"{name}_g_noflag")
    A("s_lshl_b32 s28, s24, 8")
    A("s_setprio 0")
    ts_mark(A, 0, name, kidx + 1)
    A("s_cmp_lg_u32 s24, 7")
    A(f"s_cbranch_scc1 {name}_g_gemm")
    srd(A, 8, 36, 37, 0, 2048 * 1280)
    srd(A, 12, 34, 35, 0, 1280)
    srd(A, 16, 46, 47, WS_GATE, GATE_SIZE)
    A("s_lshl_b32 s22, s23, 6")
    A("s_lshl_b32 s29, s21, 4")
    A("s_add_u32 s22, s22, s29")
    gate_rows(A, 22, 1, 8, 12, 16, 2)
    A(f"s_branch {name}_exit")
    A.label(f"{name}_g_gemm")
    G = Gemm(A, 4, 64, 2, 2, 1, 2, 2, 0, 10, 60, 21, 22, 29, 1)
    A("s_lshr_b32 s22, s21, 1")
    A("s_and_b32 s29, s21, 1")
    G.setup_reads()
    vAcc = (G.vend + 3) // 4 * 4
    def acc1(nb, mb): return vAcc + 16 * nb
    def acc2(nb, mb): return vAcc + 32 + 16 * nb
    for i in range(64):
        A(f"v_mov_b32 v{vAcc+i}, 0")
    def reads(kk, fb, so):
        A(f"ds_read_b128 {vr(G.Xf(fb,0),4)}, v{G.vXb+kk} offset:{so}")
        for nb in range(2):
            A(f"ds_read_b64_tr_b16 {vr(G.Wf(fb,nb),2)}, v{G.vWb+nb} offset:{so+kk*4096}")
            A(f"ds_read_b64_tr_b16 {vr(G.Wf(fb,nb)+2,2)}, v{G.vWb+nb} offset:{so+kk*4096+1024}")
    def cstep(acc, slot):
        so = slot * SLOT
        A("s_barrier")
        if cprio: A(f"s_setprio {cprio}")
        reads(0, 0, so); reads(1, 1, so)
        A("s_waitcnt lgkmcnt(5)"); G.mfmas(0, acc); reads(2, 0, so)
        A("s_waitcnt lgkmcnt(5)"); G.mfmas(1, acc); reads(3, 1, so)
        A("s_waitcnt lgkmcnt(5)"); G.mfmas(0, acc)
        A("s_waitcnt lgkmcnt(0)"); G.mfmas(1, acc)
        if cprio: A("s_setprio 0")
    A("s_mov_b32 s68, 5")
    A.lines.append(".p2align 6")
    A.label(f"{name}_g_c1")
    cstep(acc1, 0); cstep(acc1, 1)
    A("s_sub_u32 s68, s68, 1")
    A("s_cmp_lg_u32 s68, 0")
    A(f"s_cbranch_scc1 {name}_g_c1")
    ts_mark(A, 1, name, kidx + 1)
    vE = vAcc + 64
    srd(A, 12, 38, 39, 0, 4096)
    srd(A, 16, 46, 47, WS_U, U_SIZE)
    A("v_and_b32 v2, 31, v1")
    A("v_lshrrev_b32 v3, 5, v1")
    A("s_lshl_b32 s33, s22, 5")
    A("s_add_u32 s33, s33, s27")
    A("v_add_u32 v2, s33, v2")
    A("v_lshlrev_b32 v4, 1, v2")
    A(f"buffer_load_ushort v{vE}, v4, s[12:15], 0 offen")
    A("s_mov_b32 s68, 16")
    A.lines.append(".p2align 6")
    A.label(f"{name}_g_c2")
    cstep(acc2, 0); cstep(acc2, 1)
    A("s_sub_u32 s68, s68, 1")
    A("s_cmp_lg_u32 s68, 0")
    A(f"s_cbranch_scc1 {name}_g_c2")
    ts_mark(A, 2, name, kidx + 1)
    if eprio: A(f"s_setprio {eprio}")
    A("s_lshl_b32 s31, s29, 7")
    A("s_add_u32 s31, s31, s28")
    A(f"s_movk_i32 s32, {U_PITCH}")
    A("v_mul_lo_u32 v6, v2, s32")
    A("v_lshl_add_u32 v6, v3, 4, v6")
    A("v_add_u32 v6, s31, v6")
    vC = 10
    A(f"v_mov_b32 v{vC}, {fhex(GC1)}")
    A(f"v_mov_b32 v{vC+1}, {fhex(GC1)}")
    A(f"v_mov_b32 v{vC+2}, {fhex(GC0)}")
    A(f"v_mov_b32 v{vC+3}, {fhex(GC0)}")
    A(f"v_mov_b32 v{vC+4}, 1.0")
    A(f"v_mov_b32 v{vC+5}, 1.0")
    A("s_waitcnt vmcnt(0)")
    A(f"v_lshlrev_b32 v{vE}, 16, v{vE}")
    A("s_nop 7")
    vT = G.vF
    for nb in range(2):
        a1 = acc1(nb, 0); a2 = acc2(nb, 0)
        gelu_pk(A, [a1 + 2 * i for i in range(8)], vT, (vC, vC + 2, vC + 4))
        for i in range(16):
            A(f"v_add_f32 v{a2+i}, v{a2+i}, v{vE}")
        for i in range(8):
            A(f"v_pk_mul_f32 {vr(a1+2*i,2)}, {vr(a1+2*i,2)}, {vr(a2+2*i,2)}")
        if nb == 1:
            lab = A.newlabel(f"{name}_nz")
            A("s_cmp_eq_u32 s24, 6")
            A("s_cselect_b32 s33, s29, 0")
            A("s_cmp_eq_u32 s33, 0")
            A(f"s_cbranch_scc1 {lab}")
            for i in range(16):
                A(f"v_mov_b32 v{a1+i}, 0")
            A.label(lab)
        for s_ in range(2):
            d = vT + 16 + 4 * s_
            for i in range(4):
                A(f"v_cvt_pk_bf16_f32 v{d+i}, v{a1+8*s_+2*i}, v{a1+8*s_+2*i+1}")
            A(f"buffer_store_dwordx4 {vr(d,4)}, v6, s[16:19], 0 offen offset:{nb*64+s_*32}")
        A("s_nop 1")
    if asmlib.INSTR:
        A("s_waitcnt vmcnt(0)")
    ts_mark(A, 3, name, kidx + 1)
    A(f"s_branch {name}_exit")

def ln_two_rows(A, name, in_pitch, in_off):
    sT = 52
    rows = []
    for rr in range(2):
        v0 = 4 + 36 * rr
        vIn, vOut, vT = v0, v0 + 1, v0 + 2
        vRaw = (v0 + 4 + 3) // 4 * 4
        rows.append((vIn, vOut, vT, vRaw, vRaw + 8))
    A(f"v_cmp_gt_u32 s[{sT+2}:{sT+3}], 44, v1")
    A(f"s_mov_b64 s[{sT+4}:{sT+5}], exec")
    for rr, (vIn, vOut, vT, vRaw, vX) in enumerate(rows):
        sRow = 30 + rr
        A(f"s_lshl_b32 s{sRow}, s2, 3")
        A(f"s_lshl_b32 s{sT}, s21, 1")
        A(f"s_add_u32 s{sRow}, s{sRow}, s{sT}")
        if rr: A(f"s_add_u32 s{sRow}, s{sRow}, 1")
        A(f"s_mul_i32 s{sT}, s{sRow}, {in_pitch}")
        if in_off: A(f"s_add_u32 s{sT}, s{sT}, {in_off}")
        A(f"v_lshlrev_b32 v{vT}, 4, v1")
        A(f"v_add_u32 v{vIn}, s{sT}, v{vT}")
        for i in range(4):
            A(f"v_mov_b32 v{vRaw+4+i}, 0")
        A(f"buffer_load_dwordx4 {vr(vRaw,4)}, v{vIn}, s[8:11], 0 offen")
        A(f"s_mov_b64 exec, s[{sT+2}:{sT+3}]")
        A(f"buffer_load_dwordx4 {vr(vRaw+4,4)}, v{vIn}, s[8:11], 0 offen offset:1024")
        A(f"s_mov_b64 exec, s[{sT+4}:{sT+5}]")
    for rr, (vIn, vOut, vT, vRaw, vX) in enumerate(rows):
        sRow = 30 + rr
        A(f"s_lshr_b32 s{sT}, s{sRow}, 6")
        A(f"s_lshl_b32 s{sT}, s{sT}, 14")
        A(f"s_and_b32 s{sT+1}, s{sRow}, 63")
        A(f"s_lshl_b32 s{sT+1}, s{sT+1}, 8")
        A(f"s_add_u32 s{sT}, s{sT}, s{sT+1}")
        A(f"s_and_b32 s{sT+1}, s{sRow}, 3")
        A(f"s_lshl_b32 s{sT+1}, s{sT+1}, 2")
        A(f"v_and_b32 v{vT}, 15, v1")
        A(f"v_xor_b32 v{vT}, s{sT+1}, v{vT}")
        A(f"v_lshlrev_b32 v{vT}, 4, v{vT}")
        A(f"v_lshrrev_b32 v{vT+1}, 4, v1")
        A(f"v_lshlrev_b32 v{vT+1}, 19, v{vT+1}")
        A(f"v_add_u32 v{vT}, v{vT}, v{vT+1}")
        A(f"v_add_u32 v{vOut}, s{sT}, v{vT}")
    A("s_waitcnt vmcnt(0)")
    def both(f):
        for r_ in rows: f(*r_)
    def unpack(vIn, vOut, vT, s, x):
        for i in range(8):
            A(f"v_lshlrev_b32 v{x+2*i}, 16, v{s+i}")
            A(f"v_and_b32 v{x+2*i+1}, 0xffff0000, v{s+i}")
        A(f"v_add_f32 v{s}, v{x}, v{x+1}")
        A(f"v_add_f32 v{s+1}, v{x+2}, v{x+3}")
        for i in range(4, 16, 2):
            A(f"v_add_f32 v{s}, v{s}, v{x+i}")
            A(f"v_add_f32 v{s+1}, v{s+1}, v{x+i+1}")
        A(f"v_add_f32 v{s}, v{s}, v{s+1}")
    both(unpack)
    def red2():
        (_, _, _, s0, _), (_, _, _, s1, _) = rows
        for sh in (8, 4, 2, 1):
            A("s_nop 0")
            A(f"v_add_f32_dpp v{s0}, v{s0}, v{s0} row_ror:{sh} row_mask:0xf bank_mask:0xf")
            A(f"v_add_f32_dpp v{s1}, v{s1}, v{s1} row_ror:{sh} row_mask:0xf bank_mask:0xf")
        for op in ("v_permlane16_swap_b32", "v_permlane32_swap_b32"):
            A(f"v_mov_b32 v{s0+1}, v{s0}")
            A(f"v_mov_b32 v{s1+1}, v{s1}")
            A("s_nop 1")
            A(f"{op} v{s0}, v{s0+1}")
            A(f"{op} v{s1}, v{s1+1}")
            A("s_nop 1")
            A(f"v_add_f32 v{s0}, v{s0}, v{s0+1}")
            A(f"v_add_f32 v{s1}, v{s1}, v{s1+1}")
    A("s_nop 1")
    red2()
    def center(vIn, vOut, vT, s, x):
        A(f"v_mul_f32 v{s}, {fhex(1.0/864)}, v{s}")
        for i in range(16):
            A(f"v_sub_f32 v{x+i}, v{x+i}, v{s}")
        for i in range(8, 16):
            A(f"v_cndmask_b32 v{x+i}, 0, v{x+i}, s[{sT+2}:{sT+3}]")
        A(f"v_mul_f32 v{s}, v{x}, v{x}")
        A(f"v_mul_f32 v{s+1}, v{x+1}, v{x+1}")
        for i in range(2, 16, 2):
            A(f"v_fmac_f32 v{s}, v{x+i}, v{x+i}")
            A(f"v_fmac_f32 v{s+1}, v{x+i+1}, v{x+i+1}")
        A(f"v_add_f32 v{s}, v{s}, v{s+1}")
    both(center)
    A("s_nop 1")
    red2()
    def fin(vIn, vOut, vT, s, x):
        A(f"v_mov_b32 v{s+1}, {fhex(1e-5)}")
        A(f"v_fmac_f32 v{s+1}, {fhex(1.0/864)}, v{s}")
        A(f"v_rsq_f32 v{s+1}, v{s+1}")
        A("s_nop 0")
        for i in range(16):
            A(f"v_mul_f32 v{x+i}, v{x+i}, v{s+1}")
        for i in range(8):
            A(f"v_cvt_pk_bf16_f32 v{s+i}, v{x+2*i}, v{x+2*i+1}")
        A(f"buffer_store_dwordx4 {vr(s,4)}, v{vOut}, s[16:19], 0 offen sc1")
        A(f"s_mov_b64 exec, s[{sT+2}:{sT+3}]")
        A(f"s_mov_b32 s{sT}, {4*32*16384}")
        A(f"buffer_store_dwordx4 {vr(s+4,4)}, v{vOut}, s[16:19], s{sT} offen sc1")
        A(f"s_mov_b64 exec, s[{sT+4}:{sT+5}]")
    both(fin)

def gen_fused(A, name="k2_kernel", lnprio=2, lprio=1, cprio=1, eprio=1, noa=False, **kw):
    kernel_begin(A, name)
    A("s_cmp_ge_u32 s2, 512")
    A(f"s_cbranch_scc1 {name}_gexit")
    A("s_cmp_ge_u32 s2, 256")
    A(f"s_cbranch_scc1 {name}_grole")
    if noa: A("s_endpgm")
    nv, ns = k2.gen_attn(A, name, body_only=True, **kw)
    A.label(f"{name}_grole")
    g_role(A, name, 1, lnprio, lprio, cprio, eprio)
    A.label(f"{name}_gexit")
    A("s_endpgm")
    return 128, 102
```

```python
from asmlib import *
import asmlib
from k1 import *
from gemm import Gemm
from k2g import gate_rows
from k2h import ln_row_tiled
import k2

def g_role(A, name, kidx, lnprio=2, lprio=1, cprio=1, eprio=1, nslots=3, psleep=8):
    NS = 32
    SLOT = 24576
    D = nslots - 1
    A("s_sub_u32 s2, s2, 256")
    ts_begin(A)
    A("s_load_dwordx2 s[36:37], s[0:1], 0")
    A("s_load_dwordx4 s[40:43], s[0:1], 40")
    A("s_load_dwordx2 s[46:47], s[0:1], 88")
    A("s_load_dwordx2 s[34:35], s[0:1], 64")
    if lnprio: A(f"s_setprio {lnprio}")
    A("v_and_b32 v1, 63, v0")
    A("v_lshrrev_b32 v2, 6, v0")
    A("s_and_b32 s48, s2, 7")
    A("v_readfirstlane_b32 s20, v2")
    A("s_lshr_b32 s49, s2, 3")
    A("s_lshl_b32 s23, s48, 2")
    A("s_and_b32 s50, s49, 3")
    A("s_add_u32 s23, s23, s50")
    A("s_lshr_b32 s24, s49, 2")
    A("s_and_b32 s21, s20, 3")
    A("s_lshl_b32 s27, s23, 6")
    A("s_waitcnt lgkmcnt(0)")
    srd(A, 12, 46, 47, WS_FLAG, FLAG_SIZE)
    srd(A, 8, 46, 47, WS_Z, Z_SIZE)
    srd(A, 16, 46, 47, WS_Z2N, Z2N_SIZE)
    A("s_lshl_b32 s22, s2, 3")
    A("s_add_u32 s22, s22, s20")
    ln_row_tiled(A, 22, 8, 16, 1, 2, 52, 3456, 1728)
    A("s_waitcnt vmcnt(0)")
    A("s_setprio 0")
    A("s_barrier")
    A("s_cmp_lg_u32 s20, 0")
    A(f"s_cbranch_scc1 {name}_g_noflag")
    A("s_lshr_b32 s28, s2, 3")
    A("s_lshl_b32 s28, s28, 7")
    A("v_mov_b32 v2, s28")
    A("v_mov_b32 v3, 1")
    A("s_mov_b64 exec, 1")
    A("buffer_atomic_add v3, v2, s[12:15], 0 offen sc1")
    A("s_mov_b64 exec, -1")
    A.label(f"{name}_g_noflag")
    ts_mark(A, 0, name, kidx + 1)
    A("s_lshl_b32 s28, s24, 8")
    A("s_cmp_lg_u32 s24, 7")
    A(f"s_cbranch_scc1 {name}_g_gemm")
    A("s_cmp_ge_u32 s20, 4")
    A(f"s_cbranch_scc1 {name}_exit")
    srd(A, 8, 36, 37, 0, 2048 * 1280)
    srd(A, 12, 34, 35, 0, 1280)
    srd(A, 16, 46, 47, WS_GATE, GATE_SIZE)
    A("s_lshl_b32 s22, s23, 6")
    A("s_lshl_b32 s29, s21, 4")
    A("s_add_u32 s22, s22, s29")
    gate_rows(A, 22, 1, 8, 12, 16, 2)
    A(f"s_branch {name}_exit")
    A.label(f"{name}_g_gemm")
    G = Gemm(A, 4, 64, 2, 2, 1, 2, nslots, 0, 10, 60, 21, 22, 29, 1)
    A("s_lshr_b32 s22, s21, 1")
    A("s_and_b32 s29, s21, 1")
    G.init_slots()
    sOA, sOB = G.sOffA, G.sOffB
    A("s_cmp_ge_u32 s20, 4")
    A(f"s_cbranch_scc0 {name}_g_cons")
    vA, vB = 10, 12
    G.setup_dma_a(vA, 27, 4096)
    A("s_lshl_b32 s30, s24, 19")
    A("s_lshl_b32 s31, s21, 12")
    A("s_add_u32 s30, s30, s31")
    A("v_lshlrev_b32 v2, 4, v1")
    A(f"v_add_u32 v{vB}, s30, v2")
    A(f"s_add_u32 s{G.sM0B}, s31, {G.ABYTES}")
    srd(A, 8, 40, 41, 0, 2048 * 4096)
    srd(A, 4, 46, 47, WS_Z2N, Z2N_SIZE)
    if lprio: A(f"s_setprio {lprio}")
    def iss_a(slot):
        G.issue_a(slot, 8, vA, sOA)
        A(f"s_add_u32 s{sOA}, s{sOA}, 128")
    def iss_b(slot):
        A(f"s_add_u32 m0, s{G.sSlot+slot}, s{G.sM0B}")
        A("s_nop 0")
        for j in range(4):
            A(f"buffer_load_dwordx4 v{vB}, s[4:7], s{sOB} offen offset:{j*1024} sc1 lds")
        A(f"s_add_u32 s{sOB}, s{sOB}, 16384")
    A(f"s_mov_b32 s{sOA}, 0")
    A(f"s_mov_b32 s{sOB}, 0")
    for i in range(D): iss_a(i)
    A("s_cmp_lg_u32 s20, 4")
    A(f"s_cbranch_scc1 {name}_g_nopoll")
    A("v_and_b32 v2, 31, v1")
    A("v_lshlrev_b32 v2, 7, v2")
    A("s_movk_i32 s32, 0x4000")
    A.label(f"{name}_g_poll")
    A("buffer_load_dword v3, v2, s[12:15], 0 offen sc1")
    A("s_waitcnt vmcnt(0)")
    A("v_cmp_le_u32 vcc, 8, v3")
    A("s_nop 3")
    A("s_cmp_eq_u64 vcc, -1")
    A(f"s_cbranch_scc1 {name}_g_polled")
    A("s_sub_u32 s32, s32, 1")
    A("s_cmp_eq_u32 s32, 0")
    A(f"s_cbranch_scc1 {name}_g_polled")
    A(f"s_sleep {psleep}")
    A(f"s_branch {name}_g_poll")
    A.label(f"{name}_g_polled")
    A.label(f"{name}_g_nopoll")
    A("s_setprio 0")
    A("s_barrier")
    if lprio: A(f"s_setprio {lprio}")
    for i in range(D): iss_b(i)
    def lstep(wait, issue):
        A(f"s_waitcnt vmcnt({wait})")
        if lprio: A("s_setprio 0")
        A("s_barrier")
        if lprio: A(f"s_setprio {lprio}")
        if issue:
            iss_a(D); iss_b(D)
        G.rotate()
    for s_ in range(D):
        lstep(4 * (D - 1 - s_) + 6 * s_, True)
    A(f"s_mov_b32 s{G.send}, {NS - 2*D}")
    A.label(f"{name}_g_ll")
    lstep(6 * (D - 1), True)
    A(f"s_sub_u32 s{G.send}, s{G.send}, 1")
    A(f"s_cmp_lg_u32 s{G.send}, 0")
    A(f"s_cbranch_scc1 {name}_g_ll")
    for j in range(D):
        lstep(6 * (D - 1 - j), False)
    A(f"s_branch {name}_exit")
    A.label(f"{name}_g_cons")
    G.setup_reads()
    vAcc = (G.vend + 3) // 4 * 4
    def acc(nb, mb): return vAcc + 16 * nb
    for i in range(32):
        A(f"v_mov_b32 v{vAcc+i}, 0")
    vE = vAcc + 32
    srd(A, 8, 46, 47, WS_Z, Z_SIZE)
    srd(A, 12, 42, 43, 0, 4096)
    srd(A, 16, 46, 47, WS_U, U_SIZE)
    A("v_and_b32 v2, 31, v1")
    A("v_lshrrev_b32 v3, 5, v1")
    A("s_lshl_b32 s33, s22, 5")
    A("s_add_u32 s33, s33, s27")
    A("v_add_u32 v2, s33, v2")
    A("v_lshlrev_b32 v4, 1, v2")
    A(f"buffer_load_ushort v{vE}, v4, s[12:15], 0 offen")
    A("s_lshl_b32 s31, s29, 7")
    A("s_add_u32 s31, s31, s28")
    A("s_movk_i32 s32, 3456")
    A("v_mul_lo_u32 v5, v2, s32")
    A("v_lshl_add_u32 v5, v3, 4, v5")
    A("v_add_u32 v5, s31, v5")
    A(f"s_movk_i32 s32, {U_PITCH}")
    A("v_mul_lo_u32 v6, v2, s32")
    A("v_lshl_add_u32 v6, v3, 4, v6")
    A("v_add_u32 v6, s31, v6")
    for nb in range(2):
        for s_ in range(2):
            A(f"buffer_load_dwordx4 {vr(vE+4+8*nb+4*s_,4)}, v5, s[8:11], 0 offen offset:{nb*64+s_*32}")
    A("s_barrier")
    ts_mark(A, 1, name, kidx + 1)
    A(f"s_mov_b32 s{G.send}, {NS}")
    A.lines.append(".p2align 6")
    A.label(f"{name}_g_cl")
    A("s_barrier")
    if cprio: A(f"s_setprio {cprio}")
    G.cur_addrs()
    G.compute_step(acc)
    if cprio: A("s_setprio 0")
    G.rotate()
    A(f"s_sub_u32 s{G.send}, s{G.send}, 1")
    A(f"s_cmp_lg_u32 s{G.send}, 0")
    A(f"s_cbranch_scc1 {name}_g_cl")
    ts_mark(A, 2, name, kidx + 1)
    if eprio: A(f"s_setprio {eprio}")
    A("s_waitcnt vmcnt(0)")
    A(f"v_lshlrev_b32 v{vE}, 16, v{vE}")
    A("s_nop 7")
    for nb in range(2):
        for s_ in range(2):
            a = acc(nb, 0) + 8 * s_
            z = vE + 4 + 8 * nb + 4 * s_
            t = vE + 20
            for i in range(4):
                A(f"v_lshlrev_b32 v{t+2*i}, 16, v{z+i}")
                A(f"v_and_b32 v{t+2*i+1}, 0xffff0000, v{z+i}")
            for i in range(8):
                A(f"v_add_f32 v{a+i}, v{a+i}, v{vE}")
                A(f"v_mul_f32 v{a+i}, v{a+i}, v{t+i}")
            if nb == 1:
                lab = A.newlabel(f"{name}_nz")
                A("s_cmp_eq_u32 s24, 6")
                A("s_cselect_b32 s33, s29, 0")
                A("s_cmp_eq_u32 s33, 0")
                A(f"s_cbranch_scc1 {lab}")
                for i in range(8):
                    A(f"v_mov_b32 v{a+i}, 0")
                A.label(lab)
            for i in range(4):
                A(f"v_cvt_pk_bf16_f32 v{z+i}, v{a+2*i}, v{a+2*i+1}")
            A(f"buffer_store_dwordx4 {vr(z,4)}, v6, s[16:19], 0 offen offset:{nb*64+s_*32}")
    if asmlib.INSTR:
        A("s_waitcnt vmcnt(0)")
    ts_mark(A, 3, name, kidx + 1)
    A(f"s_branch {name}_exit")

def gen_fused(A, name="k2_kernel", lnprio=2, lprio=1, cprio=1, eprio=1, noa=False, psleep=8, **kw):
    kernel_begin(A, name)
    A("s_cmp_ge_u32 s2, 512")
    A(f"s_cbranch_scc1 {name}_gexit")
    A("s_cmp_ge_u32 s2, 256")
    A(f"s_cbranch_scc1 {name}_grole")
    if noa: A("s_endpgm")
    nv, ns = k2.gen_attn(A, name, body_only=True, **kw)
    A.label(f"{name}_grole")
    g_role(A, name, 1, lnprio, lprio, cprio, eprio, 3, psleep)
    A.label(f"{name}_gexit")
    A("s_endpgm")
    return 128, 102
```

```python
from asmlib import *
import asmlib
from k1 import *
from gemm import Gemm

def wave_allreduce_add(A, r, t):
    for sh in (8, 4, 2, 1):
        A("s_nop 1")
        A(f"v_add_f32_dpp v{r}, v{r}, v{r} row_ror:{sh} row_mask:0xf bank_mask:0xf")
    A(f"v_mov_b32 v{t}, v{r}")
    A("s_nop 1")
    A(f"v_permlane16_swap_b32 v{r}, v{t}")
    A("s_nop 1")
    A(f"v_add_f32 v{r}, v{r}, v{t}")
    A(f"v_mov_b32 v{t}, v{r}")
    A("s_nop 1")
    A(f"v_permlane32_swap_b32 v{r}, v{t}")
    A("s_nop 1")
    A(f"v_add_f32 v{r}, v{r}, v{t}")

def ln_rows(A, sRow0, nrows, srdZ, srdOut, vLane, v0, sT, store_flags=""):
    vOffIn = v0; vOffOut = v0 + 1; vT = v0 + 2
    vRaw = (v0 + 6 + 3) // 4 * 4
    vX = vRaw + 8 * nrows
    A(f"s_mul_i32 s{sT}, s{sRow0}, 3456")
    A(f"s_add_u32 s{sT}, s{sT}, 1728")
    A(f"v_lshlrev_b32 v{vT}, 4, v{vLane}")
    A(f"v_add_u32 v{vOffIn}, s{sT}, v{vT}")
    A(f"s_mul_i32 s{sT}, s{sRow0}, {Z2N_PITCH}")
    A(f"v_add_u32 v{vOffOut}, s{sT}, v{vT}")
    A(f"v_cmp_gt_u32 s[{sT+2}:{sT+3}], 44, v{vLane}")
    for r in range(nrows):
        for i in range(4):
            A(f"v_mov_b32 v{vRaw+8*r+4+i}, 0")
    for r in range(nrows):
        A(f"s_mov_b32 s{sT}, {r*3456}")
        A(f"buffer_load_dwordx4 {vr(vRaw+8*r,4)}, v{vOffIn}, s[{srdZ}:{srdZ+3}], s{sT} offen")
    A(f"s_mov_b64 s[{sT+4}:{sT+5}], exec")
    A(f"s_mov_b64 exec, s[{sT+2}:{sT+3}]")
    for r in range(nrows):
        A(f"s_mov_b32 s{sT}, {r*3456}")
        A(f"buffer_load_dwordx4 {vr(vRaw+8*r+4,4)}, v{vOffIn}, s[{srdZ}:{srdZ+3}], s{sT} offen offset:1024")
    A(f"s_mov_b64 exec, s[{sT+4}:{sT+5}]")
    A("s_waitcnt vmcnt(0)")
    for r in range(nrows):
        x = vX + 16 * r
        for i in range(8):
            A(f"v_lshlrev_b32 v{x+2*i}, 16, v{vRaw+8*r+i}")
            A(f"v_and_b32 v{x+2*i+1}, 0xffff0000, v{vRaw+8*r+i}")
    for r in range(nrows):
        x = vX + 16 * r; s = vRaw + 8 * r
        A(f"v_add_f32 v{s}, v{x}, v{x+1}")
        for i in range(2, 16):
            A(f"v_add_f32 v{s}, v{s}, v{x+i}")
        wave_allreduce_add(A, s, s + 1)
        A(f"v_mul_f32 v{s}, {fhex(1.0/864)}, v{s}")
        for i in range(16):
            A(f"v_sub_f32 v{x+i}, v{x+i}, v{s}")
        for i in range(8, 16):
            A(f"v_cndmask_b32 v{x+i}, 0, v{x+i}, s[{sT+2}:{sT+3}]")
        A(f"v_mul_f32 v{s}, v{x}, v{x}")
        for i in range(1, 16):
            A(f"v_fmac_f32 v{s}, v{x+i}, v{x+i}")
        wave_allreduce_add(A, s, s + 1)
        A(f"v_mov_b32 v{s+1}, {fhex(1e-5)}")
        A(f"v_fmac_f32 v{s+1}, {fhex(1.0/864)}, v{s}")
        A(f"v_rsq_f32 v{s+1}, v{s+1}")
        A("s_nop 0")
        for i in range(16):
            A(f"v_mul_f32 v{x+i}, v{x+i}, v{s+1}")
        for i in range(8):
            A(f"v_cvt_pk_bf16_f32 v{s+i}, v{x+2*i}, v{x+2*i+1}")
    for r in range(nrows):
        A(f"s_mov_b32 s{sT}, {r*Z2N_PITCH}")
        A(f"buffer_store_dwordx4 {vr(vRaw+8*r,4)}, v{vOffOut}, s[{srdOut}:{srdOut+3}], s{sT} offen {store_flags}")
    A(f"s_mov_b64 exec, s[{sT+2}:{sT+3}]")
    for r in range(nrows):
        A(f"s_mov_b32 s{sT}, {r*Z2N_PITCH}")
        A(f"buffer_store_dwordx4 {vr(vRaw+8*r+4,4)}, v{vOffOut}, s[{srdOut}:{srdOut+3}], s{sT} offen offset:1024 {store_flags}")
    A(f"s_mov_b64 exec, s[{sT+4}:{sT+5}]")
    return vX + 16 * nrows

def gen_ln(A, name="k3_kernel"):
    kernel_begin(A, name)
    A("s_cmp_ge_u32 s2, 256")
    A(f"s_cbranch_scc1 {name}_exit")
    ts_begin(A)
    A("s_load_dwordx2 s[46:47], s[0:1], 88")
    A("v_and_b32 v1, 63, v0")
    A("v_lshrrev_b32 v2, 6, v0")
    A("s_lshl_b32 s21, s2, 3")
    A("v_readfirstlane_b32 s20, v2")
    A("s_waitcnt lgkmcnt(0)")
    A("s_lshl_b32 s22, s20, 1")
    A("s_add_u32 s21, s21, s22")
    srd(A, 8, 46, 47, WS_Z, Z_SIZE)
    srd(A, 16, 46, 47, WS_Z2N, Z2N_SIZE)
    nv = ln_rows(A, 21, 2, 8, 16, 1, 2, 24)
    A.label(f"{name}_end")
    if asmlib.INSTR:
        A("s_mov_b64 exec, -1")
        A("s_waitcnt vmcnt(0)")
    ts_mark(A, 1, name, 2)
    A.label(f"{name}_exit")
    A("s_endpgm")
    return max(nv,128) if asmlib.INSTR else nv, 102

def gemm_loop(A, G, name, nsteps, srdA, srdB, acc, stepA, stepB, started=False):
    D = G.nslots - 1
    def adv():
        A(f"s_add_u32 s{G.sOffA}, s{G.sOffA}, {stepA}")
        A(f"s_add_u32 s{G.sOffB}, s{G.sOffB}, {stepB}")
    for i in range(min(D, nsteps)):
        G.issue(i, srdA, srdB); adv()
    sCnt = G.send
    nsteady = nsteps - D
    if nsteady > 0:
        A(f"s_mov_b32 s{sCnt}, {nsteady}")
        A.lines.append(".p2align 6")
        A.label(f"{name}_loop")
        A(f"s_waitcnt vmcnt({(D-1)*G.ndma})")
        A("s_barrier")
        G.cur_addrs()
        def mid():
            G.issue(D, srdA, srdB); adv()
        G.compute_step(acc, mid)
        G.rotate()
        A(f"s_sub_u32 s{sCnt}, s{sCnt}, 1")
        A(f"s_cmp_lg_u32 s{sCnt}, 0")
        A(f"s_cbranch_scc1 {name}_loop")
    for j in range(min(D, nsteps)):
        A(f"s_waitcnt vmcnt({(min(D,nsteps)-1-j)*G.ndma})")
        A("s_barrier")
        G.cur_addrs()
        G.compute_step(acc)
        G.rotate()

def gen_spatial(A, name="k4_kernel"):
    kernel_begin(A, name)
    A("s_cmp_ge_u32 s2, 256")
    A(f"s_cbranch_scc1 {name}_exit")
    ts_begin(A)
    A("s_load_dwordx4 s[40:43], s[0:1], 40")
    A("s_load_dwordx2 s[46:47], s[0:1], 88")
    A("v_and_b32 v1, 63, v0")
    A("v_lshrrev_b32 v2, 6, v0")
    A("s_and_b32 s48, s2, 7")
    A("v_readfirstlane_b32 s20, v2")
    A("s_lshr_b32 s49, s2, 3")
    A("s_lshr_b32 s21, s20, 1")
    A("s_and_b32 s22, s20, 1")
    A("s_lshl_b32 s23, s48, 2")
    A("s_and_b32 s50, s49, 3")
    A("s_add_u32 s23, s23, s50")
    A("s_lshr_b32 s24, s49, 2")
    A("s_lshl_b32 s25, s24, 2")
    A("s_mul_i32 s26, s24, 3")
    A("s_add_u32 s26, s26, 3")
    A("s_cmp_lt_u32 s24, 3")
    A("s_cselect_b32 s25, s25, s26")
    A("s_cselect_b32 s26, 4, 3")
    A("s_waitcnt lgkmcnt(0)")
    srd(A, 8, 40, 41, 0, 2048 * 4096)
    srd(A, 12, 46, 47, WS_Z2N, Z2N_SIZE)
    G = Gemm(A, 4, 64, 2, 2, 1, 2, 4, 0, 10, 60, 20, 21, 22, 1)
    A("s_lshl_b32 s27, s23, 6")
    A("s_lshl_b32 s28, s25, 6")
    G.setup_dma(27, 4096, 28, 1728)
    G.init_slots()
    A(f"s_mov_b32 s{G.sOffA}, 0")
    A(f"s_mov_b32 s{G.sOffB}, 0")
    G.setup_reads()
    vAcc = (G.vend + 3) // 4 * 4
    def acc(nb, mb): return vAcc + 16 * nb
    for i in range(32):
        A(f"v_mov_b32 v{vAcc+i}, 0")
    gemm_loop(A, G, name, 32, 8, 12, acc, 128, 64 * 1728)
    vE = vAcc + 32
    srd(A, 8, 46, 47, WS_Z, Z_SIZE)
    srd(A, 12, 42, 43, 0, 4096)
    srd(A, 16, 46, 47, WS_U, U_SIZE)
    A("v_and_b32 v2, 31, v1")
    A("v_lshrrev_b32 v3, 5, v1")
    A("s_lshl_b32 s29, s21, 5")
    A("s_add_u32 s29, s29, s27")
    A("v_add_u32 v2, s29, v2")
    A("v_lshlrev_b32 v4, 1, v2")
    A(f"buffer_load_ushort v{vE}, v4, s[12:15], 0 offen")
    A("s_lshl_b32 s30, s22, 1")
    A("s_add_u32 s31, s30, s25")
    A("s_lshl_b32 s31, s31, 6")
    A("s_movk_i32 s32, 3456")
    A("v_mul_lo_u32 v5, v2, s32")
    A("v_lshl_add_u32 v5, v3, 4, v5")
    A("v_add_u32 v5, s31, v5")
    A("s_movk_i32 s32, 1728")
    A("v_mul_lo_u32 v6, v2, s32")
    A("v_lshl_add_u32 v6, v3, 4, v6")
    A("v_add_u32 v6, s31, v6")
    for nb in range(2):
        for s in range(2):
            A(f"buffer_load_dwordx4 {vr(vE+4+8*nb+4*s,4)}, v5, s[8:11], 0 offen offset:{nb*64+s*32}")
    A("s_waitcnt vmcnt(0)")
    A(f"v_lshlrev_b32 v{vE}, 16, v{vE}")
    for nb in range(2):
        lab = A.newlabel(f"{name}_skip")
        A(f"s_add_u32 s33, s30, {nb}")
        A("s_cmp_ge_u32 s33, s26")
        A(f"s_cbranch_scc1 {lab}")
        for s in range(2):
            a = acc(nb, 0) + 8 * s
            z = vE + 4 + 8 * nb + 4 * s
            t = vE + 20
            for i in range(4):
                A(f"v_lshlrev_b32 v{t+2*i}, 16, v{z+i}")
                A(f"v_and_b32 v{t+2*i+1}, 0xffff0000, v{z+i}")
            for i in range(8):
                A(f"v_add_f32 v{a+i}, v{a+i}, v{vE}")
                A(f"v_mul_f32 v{a+i}, v{a+i}, v{t+i}")
            for i in range(4):
                A(f"v_cvt_pk_bf16_f32 v{z+i}, v{a+2*i}, v{a+2*i+1}")
            A(f"buffer_store_dwordx4 {vr(z,4)}, v6, s[16:19], 0 offen offset:{nb*64+s*32}")
        A.label(lab)
    A.label(f"{name}_end")
    if asmlib.INSTR:
        A("s_mov_b64 exec, -1")
        A("s_waitcnt vmcnt(0)")
    ts_mark(A, 1, name, 3)
    A.label(f"{name}_exit")
    A("s_endpgm")
    return max(vE+32,128) if asmlib.INSTR else vE+32, 102

def gen_final(A, name="k5_kernel"):
    kernel_begin(A, name)
    A("s_cmp_ge_u32 s2, 160")
    A(f"s_cbranch_scc1 {name}_exit")
    ts_begin(A)
    A("s_load_dwordx2 s[40:41], s[0:1], 16")
    A("s_load_dwordx2 s[42:43], s[0:1], 56")
    A("s_load_dwordx2 s[44:45], s[0:1], 72")
    A("s_load_dwordx2 s[46:47], s[0:1], 88")
    A("v_and_b32 v1, 63, v0")
    A("v_lshrrev_b32 v2, 6, v0")
    A("s_and_b32 s48, s2, 7")
    A("v_readfirstlane_b32 s20, v2")
    A("s_lshr_b32 s49, s2, 3")
    A("s_lshr_b32 s21, s20, 1")
    A("s_and_b32 s22, s20, 1")
    A("s_lshl_b32 s23, s48, 2")
    A("s_and_b32 s50, s49, 3")
    A("s_add_u32 s23, s23, s50")
    A("s_lshr_b32 s24, s49, 2")
    A("s_waitcnt lgkmcnt(0)")
    G = Gemm(A, 4, 64, 2, 2, 1, 2, 4, 0, 10, 60, 20, 21, 22, 1)
    A("s_lshl_b32 s27, s23, 6")
    A("s_lshl_b32 s28, s24, 8")
    vAcc = (G.vend + 3) // 4 * 4
    def accA(nb, mb): return vAcc + 16 * nb
    def accB(nb, mb): return vAcc + 32 + 16 * nb
    for i in range(64):
        A(f"v_mov_b32 v{vAcc+i}, 0")
    G.setup_reads()
    srd(A, 8, 46, 47, WS_O, O_SIZE)
    srd(A, 12, 40, 41, 0, 640 * 1280)
    G.setup_dma(27, 1280, 28, 1280)
    G.init_slots()
    A(f"s_mov_b32 s{G.sOffA}, 0")
    A(f"s_mov_b32 s{G.sOffB}, 0")
    gemm_loop(A, G, name + "_a", 10, 8, 12, accA, 128, 64 * 1280)
    A("s_barrier")
    srd(A, 8, 46, 47, WS_U, U_SIZE)
    srd(A, 12, 42, 43, 0, 864 * 1280)
    G.setup_dma(27, U_PITCH, 28, 1280)
    A(f"s_mov_b32 s{G.sOffA}, 0")
    A(f"s_mov_b32 s{G.sOffB}, 0")
    gemm_loop(A, G, name + "_b", 14, 8, 12, accB, 128, 64 * 1280)
    vE = vAcc + 64
    srd(A, 8, 46, 47, WS_GATE, GATE_SIZE)
    srd(A, 16, 44, 45, 0, 2048 * 1280)
    A("v_and_b32 v2, 31, v1")
    A("v_lshrrev_b32 v3, 5, v1")
    A("s_lshl_b32 s29, s21, 5")
    A("s_add_u32 s29, s29, s27")
    A("v_add_u32 v2, s29, v2")
    A("v_lshlrev_b32 v4, 2, v2")
    A(f"buffer_load_dword v{vE}, v4, s[8:11], 0 offen")
    A("s_lshl_b32 s31, s22, 7")
    A("s_add_u32 s31, s31, s28")
    A("s_movk_i32 s32, 1280")
    A("v_mul_lo_u32 v6, v2, s32")
    A("v_lshl_add_u32 v6, v3, 4, v6")
    A("v_add_u32 v6, s31, v6")
    A("s_waitcnt vmcnt(0)")
    A(f"v_sub_f32 v{vE+1}, 1.0, v{vE}")
    A("s_nop 7")
    for nb in range(2):
        for s in range(2):
            a = accA(nb, 0) + 8 * s; b = accB(nb, 0) + 8 * s
            for i in range(8):
                A(f"v_mul_f32 v{a+i}, v{a+i}, v{vE}")
                A(f"v_fmac_f32 v{a+i}, v{b+i}, v{vE+1}")
            d = vE + 4 + 4 * (2 * nb + s)
            for i in range(4):
                A(f"v_cvt_pk_bf16_f32 v{d+i}, v{a+2*i}, v{a+2*i+1}")
            A(f"buffer_store_dwordx4 {vr(d,4)}, v6, s[16:19], 0 offen offset:{nb*64+s*32}")
    A.label(f"{name}_end")
    if asmlib.INSTR:
        A("s_mov_b64 exec, -1")
        A("s_waitcnt vmcnt(0)")
    ts_mark(A, 1, name, 4)
    A.label(f"{name}_exit")
    A("s_endpgm")
    return max(vE+24,128) if asmlib.INSTR else vE+24, 102
```

```python
from asmlib import *
import asmlib
from k1 import *

def gen_final2(A, name="k5_kernel", kidx=4, store_flags=""):
    kernel_begin(A, name)
    NSL = 7; D = NSL - 1
    AB = 8192; SLOT = 8192 + 12288
    NA, NB_ = 10, 14
    NT = NA + NB_
    A("s_cmp_ge_u32 s2, 224")
    A(f"s_cbranch_scc1 {name}_exit")
    ts_begin(A)
    A("s_load_dwordx2 s[40:41], s[0:1], 16")
    A("s_load_dwordx2 s[42:43], s[0:1], 56")
    A("s_load_dwordx2 s[44:45], s[0:1], 72")
    A("s_load_dwordx2 s[46:47], s[0:1], 88")
    A("v_and_b32 v1, 63, v0")
    A("v_lshrrev_b32 v2, 6, v0")
    A("s_and_b32 s48, s2, 7")
    A("v_readfirstlane_b32 s20, v2")
    A("s_lshr_b32 s49, s2, 3")
    A("s_lshl_b32 s23, s48, 2")
    A("s_and_b32 s50, s49, 3")
    A("s_add_u32 s23, s23, s50")
    A("s_lshr_b32 s24, s49, 2")
    A("s_lshl_b32 s27, s23, 6")
    A("s_mul_i32 s28, s24, 192")
    sSlot = 60
    for i in range(NSL):
        A(f"s_mov_b32 s{sSlot+i}, {i*SLOT}")
    def rotate():
        A(f"s_mov_b32 s70, s{sSlot}")
        for i in range(NSL - 1):
            A(f"s_mov_b32 s{sSlot+i}, s{sSlot+i+1}")
        A(f"s_mov_b32 s{sSlot+NSL-1}, s70")
    A("s_waitcnt lgkmcnt(0)")
    A("s_cmp_ge_u32 s20, 4")
    A(f"s_cbranch_scc1 {name}_cons")
    vA1, vA2, vB = 10, 12, 14
    srd(A, 4, 46, 47, WS_O, O_SIZE)
    srd(A, 8, 40, 41, 0, 640 * 1280)
    srd(A, 12, 46, 47, WS_U, U_SIZE)
    srd(A, 16, 42, 43, 0, 864 * 1280)
    A("v_lshrrev_b32 v2, 3, v1")
    A("v_and_b32 v3, 7, v1")
    A("s_lshl_b32 s29, s20, 4")
    A("s_add_u32 s29, s29, s27")
    A("v_add_u32 v4, s29, v2")
    A("v_lshrrev_b32 v5, 1, v2")
    for j in range(2):
        if j:
            A("v_or_b32 v6, 4, v5"); A("v_xor_b32 v6, v6, v3")
        else:
            A("v_xor_b32 v6, v5, v3")
        A("v_lshlrev_b32 v6, 4, v6")
        A(f"v_add_u32 v7, {8*j}, v4")
        A("s_movk_i32 s30, 1280")
        A("v_mul_lo_u32 v8, v7, s30")
        A("v_add_u32 v8, v8, v6")
        A(f"v_subrev_u32 v{vA1+j}, {j*1024}, v8")
        A(f"s_movk_i32 s30, {U_PITCH}")
        A("v_mul_lo_u32 v8, v7, s30")
        A("v_add_u32 v8, v8, v6")
        A(f"v_subrev_u32 v{vA2+j}, {j*1024}, v8")
    for j in range(3):
        A("s_mul_i32 s30, s20, 192")
        A(f"s_add_u32 s30, s30, {64*j}")
        A("v_add_u32 v2, s30, v1")
        A("v_mul_u32_u24 v3, 5462, v2")
        A("v_lshrrev_b32 v3, 16, v3")
        A("v_mul_u32_u24 v4, 12, v3")
        A("v_sub_u32 v4, v2, v4")
        A("s_movk_i32 s30, 1280")
        A("v_mul_lo_u32 v3, v3, s30")
        A("v_lshl_add_u32 v3, v4, 4, v3")
        A("v_add_u32 v3, s28, v3")
        A(f"v_subrev_u32 v{vB+j}, {j*1024}, v3") if False else None
        A(f"v_mov_b32 v{vB+j}, v3")
    A("s_lshl_b32 s31, s20, 11")
    A("s_mul_i32 s32, s20, 3072")
    A(f"s_add_u32 s32, s32, {AB}")
    sOA, sOB = 33, 34
    def issue(slot, phase):
        sa, va, sb = (4, vA1, 8) if phase == 0 else (12, vA2, 16)
        A(f"s_add_u32 m0, s{sSlot+slot}, s31")
        A("s_nop 0")
        for j in range(2):
            A(f"buffer_load_dwordx4 v{va+j}, s[{sa}:{sa+3}], s{sOA} offen offset:{j*1024} lds")
        A(f"s_add_u32 m0, s{sSlot+slot}, s32")
        A(f"s_add_u32 s{sOA}, s{sOA}, 128")
        for j in range(3):
            A(f"buffer_load_dwordx4 v{vB+j}, s[{sb}:{sb+3}], s{sOB} offen lds")
            if j < 2:
                A("s_add_u32 m0, m0, 1024")
                A("s_nop 0")
        A(f"s_add_u32 s{sOB}, s{sOB}, {64*1280}")
    A(f"s_mov_b32 s{sOA}, 0")
    A(f"s_mov_b32 s{sOB}, 0")
    for i in range(D):
        issue(i, 0)
    def lstep(s_idx):
        rem = min(D, NT - s_idx) - 1
        A(f"s_waitcnt vmcnt({rem*5})")
        A("s_barrier")
        st = s_idx + D
        if st < NT:
            if st == NA:
                A(f"s_mov_b32 s{sOA}, 0")
                A(f"s_mov_b32 s{sOB}, 0")
            issue(D, 0 if st < NA else 1)
        rotate()
    for s_ in range(0, 5): lstep(s_)
    A("s_mov_b32 s35, 13")
    A.label(f"{name}_ll")
    A(f"s_waitcnt vmcnt({(D-1)*5})")
    A("s_barrier")
    issue(D, 1)
    rotate()
    A("s_sub_u32 s35, s35, 1")
    A("s_cmp_lg_u32 s35, 0")
    A(f"s_cbranch_scc1 {name}_ll")
    for s_ in range(18, 24): lstep(s_)
    A(f"s_branch {name}_exit")
    A.label(f"{name}_cons")
    A("s_sub_u32 s21, s20, 4")
    A("s_cmp_ge_u32 s21, 3")
    A("s_cselect_b32 s22, 1, 0")
    A("s_mul_i32 s29, s22, 3")
    A("s_sub_u32 s21, s21, s29")
    vXb, vWb, vXc, vWc, vF, vAcc = 10, 14, 16, 20, 24, 56
    def Xf(kk): return vF + 8 * kk
    def Wf(kk): return vF + 8 * kk + 4
    A("v_and_b32 v2, 31, v1")
    A("s_lshl_b32 s29, s22, 5")
    A("v_add_u32 v2, s29, v2")
    A("v_lshlrev_b32 v2, 7, v2")
    A("v_lshrrev_b32 v3, 5, v1")
    A("v_bfe_u32 v4, v1, 1, 3")
    for kk in range(4):
        A(f"v_or_b32 v5, {2*kk}, v3")
        A("v_xor_b32 v5, v5, v4")
        A(f"v_lshl_add_u32 v{vXb+kk}, v5, 4, v2")
    A("v_lshrrev_b32 v2, 5, v1")
    A("v_bfe_u32 v3, v1, 2, 2")
    A("v_lshl_add_u32 v4, v2, 3, v3")
    A("v_mul_u32_u24 v4, 192, v4")
    A("v_bfe_u32 v5, v1, 4, 1")
    A("v_lshl_add_u32 v4, v5, 5, v4")
    A("v_and_b32 v5, 1, v1")
    A("v_lshl_add_u32 v4, v5, 4, v4")
    A("v_bfe_u32 v5, v1, 1, 1")
    A("v_lshl_add_u32 v4, v5, 3, v4")
    A("s_lshl_b32 s29, s21, 6")
    A(f"s_add_u32 s29, s29, {AB}")
    A(f"v_add_u32 v{vWb}, s29, v4")
    for i in range(32):
        A(f"v_mov_b32 v{vAcc+i}, 0")
    accA = vAcc; accB = vAcc + 16
    vG = vAcc + 32
    srd(A, 8, 46, 47, WS_GATE, GATE_SIZE)
    srd(A, 16, 44, 45, 0, 2048 * 1280)
    A("v_and_b32 v2, 31, v1")
    A("s_lshl_b32 s29, s22, 5")
    A("s_add_u32 s29, s29, s27")
    A("v_add_u32 v2, s29, v2")
    A("v_lshlrev_b32 v4, 2, v2")
    A(f"buffer_load_dword v{vG}, v4, s[8:11], 0 offen")
    def cstep(acc):
        A("s_barrier")
        for kk in range(4):
            A(f"v_add_u32 v{vXc+kk}, s{sSlot}, v{vXb+kk}")
        A(f"v_add_u32 v{vWc}, s{sSlot}, v{vWb}")
        for kk in range(4):
            A(f"ds_read_b128 {vr(Xf(kk),4)}, v{vXc+kk}")
            A(f"ds_read_b64_tr_b16 {vr(Wf(kk),2)}, v{vWc} offset:{kk*3072}")
            A(f"ds_read_b64_tr_b16 {vr(Wf(kk)+2,2)}, v{vWc} offset:{kk*3072+768}")
        for kk in range(4):
            A(f"s_waitcnt lgkmcnt({9-3*kk})")
            A(f"v_mfma_f32_32x32x16_bf16 {vr(acc,16)}, {vr(Wf(kk),4)}, {vr(Xf(kk),4)}, {vr(acc,16)}")
        rotate()
    A(f"s_mov_b32 s35, {NA}")
    A.label(f"{name}_ca")
    cstep(accA)
    A("s_sub_u32 s35, s35, 1")
    A("s_cmp_lg_u32 s35, 0")
    A(f"s_cbranch_scc1 {name}_ca")
    A(f"s_mov_b32 s35, {NB_}")
    A.label(f"{name}_cb")
    cstep(accB)
    A("s_sub_u32 s35, s35, 1")
    A("s_cmp_lg_u32 s35, 0")
    A(f"s_cbranch_scc1 {name}_cb")
    ts_mark(A, 0, name, kidx)
    A("s_cmp_eq_u32 s24, 6")
    A("s_cselect_b32 s30, s21, 0")
    A("s_cmp_eq_u32 s30, 2")
    A(f"s_cbranch_scc1 {name}_end")
    A("v_lshrrev_b32 v3, 5, v1")
    A("s_lshl_b32 s31, s21, 6")
    A("s_add_u32 s31, s31, s28")
    A("s_movk_i32 s32, 1280")
    A("v_mul_lo_u32 v6, v2, s32")
    A("v_lshl_add_u32 v6, v3, 4, v6")
    A("v_add_u32 v6, s31, v6")
    A("s_waitcnt vmcnt(0)")
    A(f"v_sub_f32 v{vG+1}, 1.0, v{vG}")
    A("s_nop 15")
    for s_ in range(2):
        a = accA + 8 * s_; b = accB + 8 * s_
        for i in range(8):
            A(f"v_mul_f32 v{a+i}, v{a+i}, v{vG}")
            A(f"v_fmac_f32 v{a+i}, v{b+i}, v{vG+1}")
        d = vF + 4 * s_
        for i in range(4):
            A(f"v_cvt_pk_bf16_f32 v{d+i}, v{a+2*i}, v{a+2*i+1}")
        A(f"buffer_store_dwordx4 {vr(d,4)}, v6, s[16:19], 0 offen offset:{s_*32} {store_flags}")
    A.label(f"{name}_end")
    if asmlib.INSTR:
        A("s_waitcnt vmcnt(0)")
    ts_mark(A, 1, name, kidx)
    A.label(f"{name}_exit")
    A("s_endpgm")
    return 128 if asmlib.INSTR else 96, 102
```

```python
import sys
sys.path.insert(0, "dev")
from asmlib import *
import k1, k2, k3, k2f, k2g, k2h, k2i, k5, functools

HEADER = """; gated_mix__softmax_full_mha__mixer_gmlp__prompt : hand-written gfx950 kernels (generated by the author's own scripts)
"""

def build(kernels):
    A = Asm()
    head = HEADER
    for name, fn, grid, block, lds in kernels:
        head += f"; @launch kernel={name} grid=({grid},1,1) block=({block},1,1) lds={lds}\n"
    A.lines.append('.amdgcn_target "amdgcn-amd-amdhsa--gfx950"')
    descs = []
    done = set()
    for name, fn, grid, block, lds in kernels:
        if name in done: continue
        done.add(name)
        nv, ns = fn(A, name)
        descs.append((name, nv, ns))
    for name, nv, ns in descs:
        kernel_desc(A, name, nv, ns)
    return head + A.text()

if __name__ == "__main__":
    out = sys.argv[1]
    import asmlib
    if len(sys.argv) > 2 and sys.argv[2] == "instr":
        asmlib.INSTR = True
    ks = [("k1_kernel", k1.gen_k1, 256, 512, 147456),
          ("k2_kernel", functools.partial(k2i.gen_fused, order=2), 512, 512, 81920),
          ("k5_kernel", k5.gen_final2, 224, 640, 7*20480)]
    open(out, "w").write(build(ks))
```

```python
import sys
sys.path.insert(0, "dev")
from asmlib import *
import k1, k2, k3, k2f, k2g, k2h, k2i, k5, k1b, functools

HEADER = """; gated_mix__softmax_full_mha__mixer_gmlp__prompt : hand-written gfx950 kernels (generated by the author's own scripts)
"""

def build(kernels):
    A = Asm()
    head = HEADER
    for name, fn, grid, block, lds in kernels:
        head += f"; @launch kernel={name} grid=({grid},1,1) block=({block},1,1) lds={lds}\n"
    A.lines.append('.amdgcn_target "amdgcn-amd-amdhsa--gfx950"')
    descs = []
    done = set()
    for name, fn, grid, block, lds in kernels:
        if name in done: continue
        done.add(name)
        nv, ns = fn(A, name)
        descs.append((name, nv, ns))
    for name, nv, ns in descs:
        kernel_desc(A, name, nv, ns)
    return head + A.text()

if __name__ == "__main__":
    out = sys.argv[1]
    import asmlib
    if len(sys.argv) > 2 and sys.argv[2] == "instr":
        asmlib.INSTR = True
    FB = len(sys.argv) > 2 and sys.argv[2] == 'fb'
    ks = [("k1_kernel", k1b.gen_k1b, 256, 768, 147456),
          ("k2_kernel", functools.partial(k2i.gen_fused, force_fb=FB), 512, 512, 81920),
          ("k5_kernel", k5.gen_final2, 224, 640, 7*20480)]
    open(out, "w").write(build(ks))
```

```python
from asmlib import *
import asmlib
import math

import os
WS_BASE = int(os.environ.get('WS_BASE', '0'), 0)
WS_QKV = WS_BASE + 0
QKV_HEAD = 294912
QKV_SIZE = 32 * QKV_HEAD
WS_Z = WS_BASE + 0x900000
Z_SIZE = 2048 * 1728 * 2
WS_Z2N = WS_BASE + 0x1000000
Z2N_PITCH = 1792
Z2N_SIZE = 2048 * Z2N_PITCH
WS_O = WS_BASE + 0x1400000
O_SIZE = 2048 * 640 * 2
OREC_SIZE = 32 * 64 * 1536
WS_U = WS_BASE + 0x1800000
U_PITCH = 1792
U_SIZE = 2048 * U_PITCH
WS_GATE = WS_BASE + 0x1C00000
GATE_SIZE = 2048 * 4
WS_WT = WS_BASE + 0x1E00000
WT_SIZE = 7 * 26 * 12288
WS_FLAG = WS_BASE + 0x1D00000
FLAG_SIZE = 16384

PLANES = int(os.environ.get('PLANES', '1'))
QSCALE = (20 ** -0.5) * math.log2(math.e)
LOG2E = math.log2(math.e)
GC0 = -2.0 * math.sqrt(2.0 / math.pi) * LOG2E
GC1 = GC0 * 0.044715

def gelu_pk(A, regs, tmp, cvec):
    c1, c0, one = cvec
    n = len(regs)
    t = [tmp + 2 * i for i in range(n)]
    for i, r in enumerate(regs):
        A(f"v_pk_mul_f32 {vr(t[i],2)}, {vr(r,2)}, {vr(r,2)}")
    for i, r in enumerate(regs):
        A(f"v_pk_fma_f32 {vr(t[i],2)}, {vr(t[i],2)}, {vr(c1,2)}, {vr(c0,2)}")
    for i, r in enumerate(regs):
        A(f"v_pk_mul_f32 {vr(t[i],2)}, {vr(t[i],2)}, {vr(r,2)}")
    for i in range(n):
        A(f"v_exp_f32 v{t[i]}, v{t[i]}")
        A(f"v_exp_f32 v{t[i]+1}, v{t[i]+1}")
    A("s_nop 0")
    for i in range(n):
        A(f"v_pk_add_f32 {vr(t[i],2)}, {vr(t[i],2)}, {vr(one,2)}")
    for i in range(n):
        A(f"v_rcp_f32 v{t[i]}, v{t[i]}")
        A(f"v_rcp_f32 v{t[i]+1}, v{t[i]+1}")
    A("s_nop 0")
    for i, r in enumerate(regs):
        A(f"v_pk_mul_f32 {vr(r,2)}, {vr(r,2)}, {vr(t[i],2)}")

def gen_k1(A, name="k1_kernel"):
    kernel_begin(A, name)
    NST = 10
    SLOT = 49152
    vLane, vTmp = 1, 2
    vDA = 10
    vDB = 14
    vXb = 16
    vWb = 20
    vXc = 22
    vWc = 26
    vF = 28
    vAcc = 60
    vE = 124
    NV = 168
    def Xf(buf, mb): return vF + buf * 16 + mb * 4
    def Wf(buf, nb): return vF + buf * 16 + 8 + nb * 4
    def acc(nb, mb): return vAcc + (nb * 2 + mb) * 16

    A("s_cmp_ge_u32 s2, 256")
    A(f"s_cbranch_scc1 {name}_exit")
    ts_begin(A)
    A("s_load_dwordx4 s[36:39], s[0:1], 0")
    A("s_load_dwordx4 s[40:43], s[0:1], 24")
    A("s_load_dwordx2 s[44:45], s[0:1], 64")
    A("s_load_dwordx2 s[46:47], s[0:1], 88")
    A(f"v_and_b32 v{vLane}, 63, v0")
    A("v_lshrrev_b32 v2, 6, v0")
    A("s_and_b32 s48, s2, 7")
    A("v_readfirstlane_b32 s20, v2")
    A("s_lshr_b32 s49, s2, 3")
    A("s_lshr_b32 s21, s20, 1")
    A("s_and_b32 s22, s20, 1")
    A("s_and_b32 s23, s48, 1")
    A("s_lshl_b32 s23, s23, 2")
    A("s_and_b32 s50, s49, 3")
    A("s_add_u32 s23, s23, s50")
    A("s_lshr_b32 s50, s48, 1")
    A("s_xor_b32 s50, s50, s48")
    A("s_and_b32 s50, s50, 1")
    A("s_mul_i32 s27, s50, 5")
    A("s_lshr_b32 s51, s49, 2")
    A("s_lshr_b32 s50, s48, 1")
    A("s_and_b32 s50, s50, 1")
    A("s_waitcnt lgkmcnt(0)")
    A("s_or_b32 s53, s2, s20")
    A("s_cmp_lg_u32 s53, 0")
    A(f"s_cbranch_scc1 {name}_nozero")
    srd(A, 16, 46, 47, WS_FLAG, FLAG_SIZE)
    A(f"v_lshlrev_b32 v2, 4, v{vLane}")
    for i in range(4): A(f"v_mov_b32 v{4+i}, 0")
    for i in range(4):
        A(f"buffer_store_dwordx4 v[4:7], v2, s[16:19], 0 offen offset:{i*1024}")
    A("s_movk_i32 s53, 4096")
    for i in range(4):
        A(f"buffer_store_dwordx4 v[4:7], v2, s[16:19], s53 offen offset:{i*1024}")
    A.label(f"{name}_nozero")
    A("s_cmp_ge_u32 s48, 4")
    A(f"s_cbranch_scc1 {name}_zsetup")
    A("s_mov_b32 s25, 0")
    A("s_lshl_b32 s24, s50, 3")
    A("s_add_u32 s24, s24, s51")
    srd(A, 8, 36, 37, 0, 2048 * 1280)
    srd(A, 12, 38, 39, 0, 640 * 3840)
    srd(A, 16, 46, 47, WS_QKV, QKV_SIZE)
    A("s_movk_i32 s26, 3840")
    A("s_mul_i32 s52, s24, 240")
    A(f"s_branch {name}_common")
    A.label(f"{name}_zsetup")
    A("s_cmp_ge_u32 s49, 28")
    A(f"s_cbranch_scc1 {name}_gate")
    A("s_mov_b32 s25, 1")
    A("s_mul_i32 s24, s50, 7")
    A("s_add_u32 s24, s24, s51")
    srd(A, 8, 36, 37, 0, 2048 * 1280)
    srd(A, 12, 42, 43, 0, 640 * 3456)
    srd(A, 16, 46, 47, WS_Z, Z_SIZE)
    A("s_movk_i32 s26, 3456")
    A("s_lshl_b32 s52, s24, 8")
    A.label(f"{name}_common")
    A(f"v_lshrrev_b32 v2, 3, v{vLane}")
    A(f"v_and_b32 v3, 7, v{vLane}")
    A("s_lshl_b32 s53, s23, 8")
    A("s_lshl_b32 s54, s20, 5")
    A("s_add_u32 s53, s53, s54")
    A("v_add_u32 v4, s53, v2")
    A("s_movk_i32 s54, 1280")
    A("v_mul_lo_u32 v4, v4, s54")
    A("v_lshrrev_b32 v5, 1, v2")
    for j in range(4):
        if j & 1:
            A("v_or_b32 v6, 4, v5")
            A("v_xor_b32 v6, v6, v3")
        else:
            A("v_xor_b32 v6, v5, v3")
        A(f"v_lshl_add_u32 v6, v6, 4, v4")
        if j:
            A(f"v_add_u32 v{vDA+j}, {j*(8*1280-1024)}, v6")
        else:
            A(f"v_mov_b32 v{vDA}, v6")
    A(f"v_lshrrev_b32 v2, 4, v{vLane}")
    A(f"v_and_b32 v3, 15, v{vLane}")
    A("v_lshlrev_b32 v5, 2, v2")
    A("v_xor_b32 v3, v3, v5")
    A("s_lshl_b32 s53, s20, 3")
    A("v_add_u32 v4, s53, v2")
    A("v_mul_lo_u32 v4, v4, s26")
    A("v_lshl_add_u32 v4, v3, 4, v4")
    A(f"v_add_u32 v{vDB}, s52, v4")
    A("s_lshl_b32 s53, s26, 2")
    A("s_sub_u32 s53, s53, 1024")
    A(f"v_add_u32 v{vDB+1}, s53, v{vDB}")
    A("s_lshl_b32 s33, s26, 6")
    A("s_lshl_b32 s34, s20, 12")
    A("s_lshl_b32 s35, s20, 11")
    A("s_add_u32 s35, s35, 32768")
    A("s_mov_b32 s30, 0")
    A(f"s_mov_b32 s31, {SLOT}")
    A(f"s_mov_b32 s32, {2*SLOT}")

    def issue(slot_s):
        A("s_lshl_b32 s28, s27, 7")
        A("s_mul_i32 s29, s27, s33")
        A(f"s_add_u32 m0, s{slot_s}, s34")
        A("s_add_u32 s27, s27, 1")
        for j in range(4):
            A(f"buffer_load_dwordx4 v{vDA+j}, s[8:11], s28 offen offset:{j*1024} lds")
        A(f"s_add_u32 m0, s{slot_s}, s35")
        A("s_cmp_eq_u32 s27, 10")
        for j in range(2):
            A(f"buffer_load_dwordx4 v{vDB+j}, s[12:15], s29 offen offset:{j*1024} lds")
        A("s_cselect_b32 s27, 0, s27")
    issue(30)
    issue(31)
    A(f"v_and_b32 v2, 31, v{vLane}")
    A("s_lshl_b32 s53, s21, 6")
    A("v_add_u32 v2, s53, v2")
    A("v_lshlrev_b32 v2, 7, v2")
    A(f"v_lshrrev_b32 v3, 5, v{vLane}")
    A(f"v_bfe_u32 v4, v{vLane}, 1, 3")
    for kk in range(4):
        A(f"v_or_b32 v5, {2*kk}, v3")
        A("v_xor_b32 v5, v5, v4")
        A(f"v_lshl_add_u32 v{vXb+kk}, v5, 4, v2")
    A(f"v_lshrrev_b32 v2, 5, v{vLane}")
    A(f"v_bfe_u32 v3, v{vLane}, 2, 2")
    A("v_lshl_add_u32 v4, v2, 3, v3")
    A("v_lshlrev_b32 v4, 8, v4")
    A(f"v_bfe_u32 v5, v{vLane}, 4, 1")
    A("v_lshl_add_u32 v4, v5, 5, v4")
    A(f"v_and_b32 v5, 1, v{vLane}")
    A("v_lshl_add_u32 v4, v5, 4, v4")
    A(f"v_bfe_u32 v5, v{vLane}, 1, 1")
    A("v_lshl_add_u32 v4, v5, 3, v4")
    A("v_add_u32 v4, 32768, v4")
    A("s_lshl_b32 s53, s22, 1")
    for nb in range(2):
        A(f"s_add_u32 s54, s53, {nb}")
        A("v_xor_b32 v5, s54, v3")
        A(f"v_lshl_add_u32 v{vWb+nb}, v5, 6, v4")
    for i in range(64):
        A(f"v_mov_b32 v{vAcc+i}, 0")
    A("s_mov_b32 s55, 0")
    A("s_mov_b32 s56, 1")
    A("s_cmp_eq_u32 s25, 1")
    A("s_cselect_b32 s57, s24, 0")
    A("s_cmp_eq_u32 s57, 13")
    A("s_cselect_b32 s57, s22, 0")
    A.lines.append(".p2align 6")
    A.label(f"{name}_loop")
    A("s_cmp_eq_u32 s55, 9")
    A(f"s_cbranch_scc1 {name}_w0")
    A("s_waitcnt vmcnt(6)")
    A(f"s_branch {name}_w1")
    A.label(f"{name}_w0")
    A("s_waitcnt vmcnt(0)")
    A.label(f"{name}_w1")
    A("s_barrier")
    if asmlib.INSTR:
        A("s_memtime s[86:87]")
        A("s_waitcnt lgkmcnt(0)")
        A("s_sub_u32 s86, s86, s94")
        A("s_mov_b32 m0, s55")
        A("s_nop 3")
        A("v_writelane_b32 v140, s86, m0")
    for kk in range(4):
        A(f"v_add_u32 v{vXc+kk}, s30, v{vXb+kk}")
    for nb in range(2):
        A(f"v_add_u32 v{vWc+nb}, s30, v{vWb+nb}")
    def reads(kk, buf):
        for mb in range(2):
            A(f"ds_read_b128 {vr(Xf(buf,mb),4)}, v{vXc+kk} offset:{mb*4096}")
        for nb in range(2):
            A(f"ds_read_b64_tr_b16 {vr(Wf(buf,nb),2)}, v{vWc+nb} offset:{kk*4096}")
            A(f"ds_read_b64_tr_b16 {vr(Wf(buf,nb)+2,2)}, v{vWc+nb} offset:{kk*4096+1024}")
    def mfmas(buf):
        for nb in range(2):
            for mb in range(2):
                A(f"v_mfma_f32_32x32x16_bf16 {vr(acc(nb,mb),16)}, {vr(Wf(buf,nb),4)}, {vr(Xf(buf,mb),4)}, {vr(acc(nb,mb),16)}")
    A("s_cmp_lg_u32 s57, 0")
    A(f"s_cbranch_scc1 {name}_inact")
    reads(0, 0)
    A("s_cmp_ge_u32 s55, 8")
    A(f"s_cbranch_scc1 {name}_noissue")
    issue(32)
    A.label(f"{name}_noissue")
    reads(1, 1)
    A("s_waitcnt lgkmcnt(6)")
    mfmas(0)
    reads(2, 0)
    A("s_waitcnt lgkmcnt(6)")
    mfmas(1)
    reads(3, 1)
    A("s_waitcnt lgkmcnt(6)")
    mfmas(0)
    A("s_waitcnt lgkmcnt(0)")
    mfmas(1)
    A(f"s_branch {name}_next")
    A.label(f"{name}_inact")
    A("s_cmp_ge_u32 s55, 8")
    A(f"s_cbranch_scc1 {name}_next")
    issue(32)
    A.label(f"{name}_next")
    A("s_mov_b32 s53, s30")
    A("s_mov_b32 s30, s31")
    A("s_mov_b32 s31, s32")
    A("s_mov_b32 s32, s53")
    A("s_add_u32 s55, s55, 1")
    A("s_cmp_lt_u32 s55, 10")
    A(f"s_cbranch_scc1 {name}_loop")
    if asmlib.INSTR:
        A(f"s_add_u32 s96, s46, {asmlib.WS_TS + 5*0x40000}")
        A("s_addc_u32 s97, s47, 0")
        A("s_mov_b32 s98, 0x40000")
        A("s_mov_b32 s99, 0x20000")
        A("s_lshl_b32 s100, s2, 10")
        A("s_lshl_b32 s101, s20, 6")
        A("s_add_u32 s100, s100, s101")
        A(f"v_lshlrev_b32 v141, 2, v{vLane}")
        A("v_add_u32 v141, s100, v141")
        A(f"v_cmp_gt_u32 vcc, 16, v{vLane}")
        A("s_and_saveexec_b64 s[90:91], vcc")
        A("buffer_store_dword v140, v141, s[96:99], 0 offen")
        A("s_mov_b64 exec, s[90:91]")
    ts_mark(A, 0, name, 0)
    A("s_cmp_lg_u32 s57, 0")
    A(f"s_cbranch_scc1 {name}_end")
    A("s_nop 15")
    A(f"v_and_b32 v2, 31, v{vLane}")
    A(f"v_lshrrev_b32 v3, 5, v{vLane}")
    A("s_cmp_eq_u32 s25, 1")
    A(f"s_cbranch_scc1 {name}_epiz")
    A("s_lshl_b32 s53, s23, 3")
    A("s_lshl_b32 s54, s21, 1")
    A("s_add_u32 s53, s53, s54")
    A("s_mul_i32 s53, s53, 4608")
    A("v_mul_u32_u24 v4, 48, v2")
    A("v_add_u32 v4, s53, v4")
    vOff = vE
    vOff2 = vE + 4
    vScale = vE + 8
    vC0 = vE + 12
    vC1 = vE + 16
    vP2 = vE + 20
    vD = vE + 24
    vD2 = vE + 28
    A("s_mul_i32 s58, s24, 3")
    A("s_lshl_b32 s59, s22, 3")
    A(f"s_mov_b32 s60, {QKV_HEAD}")
    A(f"s_mov_b32 s61, {fhex(QSCALE)}")
    A("s_mov_b32 s62, 0x3f803f80")
    A("s_movk_i32 s63, 0x3f80")
    A("s_mov_b32 s64, 0x7fff0000")
    for u in range(4):
        nb, s = u >> 1, u & 1
        A(f"v_add_u32 v5, {4*nb+2*s}, v3")
        A("v_add_u32 v5, s59, v5")
        A("v_mul_u32_u24 v6, 52, v5")
        A("v_lshrrev_b32 v6, 8, v6")
        A("v_mul_u32_u24 v7, 5, v6")
        A("v_sub_u32 v7, v5, v7")
        A("v_add_u32 v6, s58, v6")
        A("v_lshrrev_b32 v8, 4, v6")
        A("v_and_b32 v6, 15, v6")
        A("v_lshlrev_b32 v6, 1, v6")
        A("v_cmp_le_u32 vcc, 3, v7")
        A("s_nop 1")
        A("v_addc_co_u32 v6, vcc, 0, v6, vcc")
        A("v_cmp_le_u32 vcc, 3, v7")
        A("v_subrev_u32 v9, 2, v7")
        A("s_nop 0")
        A("v_cndmask_b32 v9, v7, v9, vcc")
        A("v_mul_lo_u32 v6, v6, s60")
        A("v_lshl_add_u32 v6, v9, 4, v6")
        A("v_cmp_eq_u32 vcc, 0, v8")
        A("v_subrev_u32 v9, 1, v8")
        A("s_nop 0")
        A("v_cndmask_b32 v9, v9, 2, vcc")
        A("v_mul_u32_u24 v9, 0x600, v9")
        A("v_add_u32 v6, v6, v9")
        A("v_add_u32 v6, v6, v4")
        A(f"v_mov_b32 v{vScale+u}, 1.0")
        A(f"v_mov_b32 v9, s61")
        A(f"v_cndmask_b32 v{vScale+u}, v{vScale+u}, v9, vcc")
        A(f"v_mov_b32 v9, s62")
        A(f"v_cndmask_b32 v{vC0+u}, v9, 0, vcc")
        A(f"v_mov_b32 v9, s63")
        A(f"v_cndmask_b32 v{vC1+u}, v9, 0, vcc")
        A("v_cmp_eq_u32 vcc, 15, v5")
        A("v_mov_b32 v9, s64")
        A("s_nop 0")
        A(f"v_cndmask_b32 v{vOff+u}, v6, v9, vcc")
        A(f"v_cmp_eq_u32 s[{66+2*u}:{67+2*u}], 2, v7")
        A(f"v_add_u32 v6, {QKV_HEAD-32}, v6")
        A("s_nop 0")
        A(f"v_cndmask_b32 v{vOff2+u}, v9, v6, s[{66+2*u}:{67+2*u}]")
    for mb in range(2):
        for u in range(4):
            nb, s = u >> 1, u & 1
            a = acc(nb, mb) + 8 * s
            for i in range(8):
                A(f"v_mul_f32 v{a+i}, v{a+i}, v{vScale+u}")
            for i in range(4):
                A(f"v_cvt_pk_bf16_f32 v{vD+i}, v{a+2*i}, v{a+2*i+1}")
            maybe_p2 = (nb, s) in [(0, 1), (1, 1), (1, 0)]
            if maybe_p2:
                A(f"v_mov_b32 v{vD2}, v{vC0+u}")
                A(f"v_mov_b32 v{vD2+1}, v{vC1+u}")
                A(f"v_mov_b32 v{vD2+2}, v{vD+2}")
                A(f"v_mov_b32 v{vD2+3}, v{vD+3}")
                A(f"v_cndmask_b32 v{vD+2}, v{vD+2}, v{vC0+u}, s[{66+2*u}:{67+2*u}]")
                A(f"v_cndmask_b32 v{vD+3}, v{vD+3}, v{vC1+u}, s[{66+2*u}:{67+2*u}]")
            A(f"buffer_store_dwordx4 {vr(vD,4)}, v{vOff+u}, s[16:19], 0 offen offset:{0}" if mb == 0 else
              f"buffer_store_dwordx4 {vr(vD,4)}, v{vOff+u}, s[16:19], s65 offen")
            if maybe_p2:
                A(f"buffer_store_dwordx4 {vr(vD2,4)}, v{vOff2+u}, s[16:19], 0 offen" if mb == 0 else
                  f"buffer_store_dwordx4 {vr(vD2,4)}, v{vOff2+u}, s[16:19], s65 offen")
            A("s_nop 1")
        if mb == 0:
            A("s_movk_i32 s65, 4608")
    A(f"s_branch {name}_end")
    A.label(f"{name}_epiz")
    A("s_lshl_b32 s53, s23, 8")
    A("s_lshl_b32 s54, s21, 6")
    A("s_add_u32 s53, s53, s54")
    A("v_add_u32 v4, s53, v2")
    A("s_movk_i32 s54, 3456")
    A("v_mul_lo_u32 v4, v4, s54")
    A("v_lshl_add_u32 v4, v3, 4, v4")
    A("s_lshl_b32 s53, s24, 8")
    A("s_lshl_b32 s54, s22, 7")
    A("s_add_u32 s53, s53, s54")
    A("v_add_u32 v4, s53, v4")
    vC = vE
    A(f"v_mov_b32 v{vC}, {fhex(GC1)}")
    A(f"v_mov_b32 v{vC+1}, {fhex(GC1)}")
    A(f"v_mov_b32 v{vC+2}, {fhex(GC0)}")
    A(f"v_mov_b32 v{vC+3}, {fhex(GC0)}")
    A(f"v_mov_b32 v{vC+4}, 1.0")
    A(f"v_mov_b32 v{vC+5}, 1.0")
    vT = vE + 8
    vD = vE + 24
    A(f"s_mov_b32 s65, {32*3456}")
    for mb in range(2):
        for nb in range(2):
            a = acc(nb, mb)
            gelu_pk(A, [a + 2 * i for i in range(8)], vT, (vC, vC + 2, vC + 4))
            for s in range(2):
                for i in range(4):
                    A(f"v_cvt_pk_bf16_f32 v{vD+4*s+i}, v{a+8*s+2*i}, v{a+8*s+2*i+1}")
            for s in range(2):
                so = "0" if mb == 0 else "s65"
                A(f"buffer_store_dwordx4 {vr(vD+4*s,4)}, v4, s[16:19], {so} offen offset:{nb*64+s*32}")
            A("s_nop 1")
    A(f"s_branch {name}_end")
    A.label(f"{name}_gate")
    A("s_sub_u32 s50, s48, 4")
    A("s_lshl_b32 s50, s50, 2")
    A("s_sub_u32 s51, s49, 28")
    A("s_add_u32 s50, s50, s51")
    A("s_lshl_b32 s50, s50, 7")
    A("s_lshl_b32 s51, s20, 4")
    A("s_add_u32 s50, s50, s51")
    srd(A, 8, 36, 37, 0, 2048 * 1280)
    srd(A, 12, 44, 45, 0, 1280)
    srd(A, 16, 46, 47, WS_GATE, GATE_SIZE)
    A(f"v_lshrrev_b32 v2, 4, v{vLane}")
    A(f"v_and_b32 v3, 15, v{vLane}")
    A("v_mul_u32_u24 v3, 80, v3")
    A("v_add_u32 v4, s50, v2")
    A("s_movk_i32 s54, 1280")
    A("v_mul_lo_u32 v5, v4, s54")
    A("v_add_u32 v5, v5, v3")
    for i in range(5):
        A(f"buffer_load_dwordx4 {vr(20+4*i,4)}, v3, s[12:15], 0 offen offset:{16*i}")
    for it in range(4):
        for i in range(5):
            A(f"buffer_load_dwordx4 {vr(40+20*it+4*i,4)}, v5, s[8:11], 0 offen offset:{16*i}")
        A(f"v_add_u32 v5, {4*1280}, v5")
    A("s_waitcnt vmcnt(0)")
    for it in range(4):
        A(f"v_mov_b32 v{10+it}, 0")
        for i in range(20):
            A(f"v_dot2_f32_bf16 v{10+it}, v{40+20*it+i}, v{20+i}, v{10+it}")
    A("s_nop 3")
    for sh in (8, 4, 2, 1):
        for it in range(4):
            A(f"v_add_f32_dpp v{10+it}, v{10+it}, v{10+it} row_ror:{sh} row_mask:0xf bank_mask:0xf")
        A("s_nop 1")
    for it in range(4):
        A(f"v_mul_f32 v{10+it}, {fhex(-LOG2E)}, v{10+it}")
    for it in range(4):
        A(f"v_exp_f32 v{10+it}, v{10+it}")
    A("s_nop 0")
    for it in range(4):
        A(f"v_add_f32 v{10+it}, 1.0, v{10+it}")
    for it in range(4):
        A(f"v_rcp_f32 v{10+it}, v{10+it}")
    A("v_lshlrev_b32 v4, 2, v4")
    A(f"v_and_b32 v3, 15, v{vLane}")
    A("v_cmp_eq_u32 vcc, 0, v3")
    A("s_and_saveexec_b64 s[52:53], vcc")
    for it in range(4):
        A(f"buffer_store_dword v{10+it}, v4, s[16:19], 0 offen offset:{16*it}")
    A.label(f"{name}_end")
    if asmlib.INSTR:
        A("s_mov_b64 exec, -1")
        A("s_waitcnt vmcnt(0)")
    ts_mark(A, 1, name, 0)
    A.label(f"{name}_exit")
    A("s_endpgm")
    return NV, 102
```

```python
from asmlib import *
import asmlib
from k1 import *

WS_Z1 = WS_BASE + 0x900000
Z1_PITCH = 1792
Z1_SIZE = 2048 * Z1_PITCH
WS_Z2 = WS_BASE + 0xC80000
Z2_PITCH = 1728
Z2_SIZE = 2048 * Z2_PITCH

def gen_k1b(A, name="k1_kernel", kidx=0, sf="", prefetch=True, l2pf=False, nocomp=False, nodma=False, noepi=False, pp=False, pflate=True):
    kernel_begin(A, name)
    NST = 10; NSL = 3; D = NSL - 1
    AB = 16384
    SUB = 8192
    SLOT = AB + 4 * SUB
    A("s_cmp_ge_u32 s2, 256")
    A(f"s_cbranch_scc1 {name}_exit")
    ts_begin(A)
    A("s_load_dwordx4 s[36:39], s[0:1], 0")
    A("s_load_dwordx2 s[40:41], s[0:1], 16")
    A("s_load_dwordx4 s[52:55], s[0:1], 32")
    A("s_load_dwordx2 s[42:43], s[0:1], 56")
    A("s_load_dwordx2 s[46:47], s[0:1], 88")
    A("v_and_b32 v1, 63, v0")
    A("v_lshrrev_b32 v2, 6, v0")
    A("s_and_b32 s48, s2, 7")
    A("v_readfirstlane_b32 s20, v2")
    A("s_lshr_b32 s49, s2, 3")
    A("s_and_b32 s23, s48, 1")
    A("s_lshl_b32 s23, s23, 3")
    A("s_and_b32 s50, s49, 7")
    A("s_add_u32 s23, s23, s50")
    A("s_lshr_b32 s24, s48, 1")
    A("s_lshl_b32 s24, s24, 2")
    A("s_lshr_b32 s50, s49, 3")
    A("s_add_u32 s24, s24, s50")
    A("s_lshr_b32 s50, s48, 1")
    A("s_xor_b32 s50, s50, s48")
    A("s_and_b32 s50, s50, 1")
    A("s_mul_i32 s27, s50, 5")
    sSlot = 60
    for i in range(NSL):
        A(f"s_mov_b32 s{sSlot+i}, {i*SLOT}")
    def rotate():
        A(f"s_mov_b32 s63, s{sSlot}")
        for i in range(NSL - 1):
            A(f"s_mov_b32 s{sSlot+i}, s{sSlot+i+1}")
        A(f"s_mov_b32 s{sSlot+NSL-1}, s63")
    A("s_waitcnt lgkmcnt(0)")
    A("s_cmp_lg_u32 s2, 0")
    A(f"s_cbranch_scc1 {name}_nozero")
    A("s_cmp_lg_u32 s20, 0")
    A(f"s_cbranch_scc1 {name}_nozero")
    srd(A, 16, 46, 47, WS_FLAG, FLAG_SIZE)
    A("v_lshlrev_b32 v2, 4, v1")
    for i in range(4): A(f"v_mov_b32 v{4+i}, 0")
    for i in range(4):
        A(f"buffer_store_dwordx4 v[4:7], v2, s[16:19], 0 offen offset:{i*1024}")
    A.label(f"{name}_nozero")
    if l2pf:
        A("s_cmp_ge_u32 s20, 8")
        A(f"s_cbranch_scc1 {name}_nopf")
        A("v_lshrrev_b32 v2, 3, v1")
        A("v_and_b32 v3, 7, v1")
        A("v_lshlrev_b32 v3, 4, v3")
        A("s_lshl_b32 s29, s49, 3")
        A("s_add_u32 s29, s29, s20")
        A("s_cmp_ge_u32 s29, 128")
        A(f"s_cbranch_scc1 {name}_pfw")
        srd(A, 4, 36, 37, 0, 2048 * 1280)
        A("s_and_b32 s30, s48, 1")
        A("s_lshl_b32 s30, s30, 10")
        A("s_lshl_b32 s31, s29, 3")
        A("s_add_u32 s30, s30, s31")
        A("v_add_u32 v2, s30, v2")
        A("s_movk_i32 s30, 1280")
        A("v_mul_lo_u32 v2, v2, s30")
        A("v_add_u32 v2, v2, v3")
        A("s_movk_i32 s31, 128")
        A(f"s_branch {name}_pfgo")
        A.label(f"{name}_pfw")
        A("s_sub_u32 s29, s29, 128")
        A("s_lshr_b32 s30, s29, 1")
        A("s_lshr_b32 s33, s48, 1")
        A("s_and_b32 s34, s29, 1")
        A("s_cmp_eq_u32 s34, 0")
        A(f"s_cbranch_scc0 {name}_pfin")
        srd(A, 4, 38, 39, 0, 640 * 3840)
        A("s_mul_i32 s30, s30, 3840")
        A("s_lshl_b32 s33, s33, 10")
        A("s_add_u32 s30, s30, s33")
        A("v_lshlrev_b32 v2, 7, v2")
        A("v_add_u32 v2, v2, v3")
        A("v_add_u32 v2, s30, v2")
        A("s_mov_b32 s31, 245760")
        A(f"s_branch {name}_pfgo")
        A.label(f"{name}_pfin")
        srd(A, 4, 52, 53, 0, 640 * 3456)
        A("s_mul_i32 s30, s30, 3456")
        A("s_lshl_b32 s33, s33, 9")
        A("s_add_u32 s30, s30, s33")
        A("v_and_b32 v4, 3, v2")
        A("v_lshlrev_b32 v4, 7, v4")
        A("v_cmp_gt_u32 vcc, 4, v2")
        A("v_mov_b32 v5, 1728")
        A("s_nop 0")
        A("v_cndmask_b32 v5, 0, v5, vcc")
        A("v_add_u32 v2, v4, v5")
        A("v_add_u32 v2, v2, v3")
        A("v_add_u32 v2, s30, v2")
        A("s_mov_b32 s31, 221184")
        A.label(f"{name}_pfgo")
        A("s_mov_b32 s32, s27")
        for i in range(10):
            A("s_mul_i32 s33, s32, s31")
            A(f"buffer_load_dwordx4 v[{152+4*(i%2)}:{155+4*(i%2)}], v2, s[4:7], s33 offen")
            A("s_add_u32 s32, s32, 1")
            A("s_cmp_eq_u32 s32, 10")
            A("s_cselect_b32 s32, 0, s32")
        A.label(f"{name}_nopf")
    A("s_cmp_eq_u32 s24, 15")
    A(f"s_cbranch_scc1 {name}_exit")
    A("s_cmp_ge_u32 s20, 8")
    A(f"s_cbranch_scc0 {name}_cons")
    A("s_sub_u32 s21, s20, 8")
    vA, vB = 10, 14
    srd(A, 4, 36, 37, 0, 2048 * 1280)
    srd(A, 8, 38, 39, 0, 640 * 3840)
    srd(A, 12, 52, 53, 0, 640 * 3456)
    A("v_lshrrev_b32 v2, 3, v1")
    A("v_and_b32 v3, 7, v1")
    A("s_lshl_b32 s29, s23, 7")
    A("s_lshl_b32 s30, s21, 5")
    A("s_add_u32 s29, s29, s30")
    A("v_add_u32 v4, s29, v2")
    A("s_movk_i32 s30, 1280")
    A("v_mul_lo_u32 v4, v4, s30")
    A("v_lshrrev_b32 v5, 1, v2")
    for j in range(4):
        if j & 1:
            A("v_or_b32 v6, 4, v5"); A("v_xor_b32 v6, v6, v3")
        else:
            A("v_xor_b32 v6, v5, v3")
        A("v_lshl_add_u32 v6, v6, 4, v4")
        A(f"v_add_u32 v{vA+j}, {j*(8*1280-1024)}, v6")
    A("v_and_b32 v5, 2, v2")
    A("v_lshlrev_b32 v5, 1, v5")
    A("v_xor_b32 v5, v5, v3")
    A("v_lshlrev_b32 v5, 4, v5")
    A("s_lshl_b32 s29, s21, 4")
    A("v_add_u32 v4, s29, v2")
    colb = []
    A("s_lshl_b32 s31, s24, 8")
    A("s_lshl_b32 s32, s24, 7")
    A("s_movk_i32 s30, 3840")
    A("v_mul_lo_u32 v6, v4, s30")
    A("v_add_u32 v6, v6, v5")
    A("v_add_u32 v6, s31, v6")
    for sub in range(2):
        for i in range(2):
            A(f"v_add_u32 v{vB+2*sub+i}, {sub*128 + i*(8*3840-1024)}, v6")
    A("s_movk_i32 s30, 3456")
    A("v_mul_lo_u32 v6, v4, s30")
    A("v_add_u32 v6, v6, v5")
    A("v_add_u32 v6, s32, v6")
    for i in range(2):
        A(f"v_add_u32 v{vB+4+i}, {1728 + i*(8*3456-1024)}, v6")
        A(f"v_add_u32 v{vB+6+i}, {i*(8*3456-1024)}, v6")
    A("s_lshl_b32 s33, s21, 12")
    A("s_lshl_b32 s34, s21, 11")
    A(f"s_add_u32 s34, s34, {AB}")
    def issue(slot):
        A("s_lshl_b32 s28, s27, 7")
        A("s_mul_i32 s29, s27, 245760")
        A("s_mul_i32 s30, s27, 221184")
        A(f"s_add_u32 m0, s{sSlot+slot}, s33")
        A("s_add_u32 s27, s27, 1")
        for j in range(4):
            A(f"buffer_load_dwordx4 v{vA+j}, s[4:7], s28 offen offset:{j*1024} lds")
        for sub in range(4):
            A(f"s_add_u32 m0, s{sSlot+slot}, s34")
            if sub: A(f"s_add_u32 m0, m0, {sub*SUB}")
            A("s_nop 0")
            sr_, so = ("s[8:11]", "s29") if sub < 2 else ("s[12:15]", "s30")
            for i in range(2):
                A(f"buffer_load_dwordx4 v{vB+2*sub+i}, {sr_}, {so} offen offset:{i*1024} lds")
        A("s_cmp_eq_u32 s27, 10")
        A("s_cselect_b32 s27, 0, s27")
    NPER = 12
    NPRE = 2 if pp else D
    for i in range(NPRE): issue(i)
    if prefetch:
        A("s_mul_i32 s35, s23, 15")
        A("s_add_u32 s35, s35, s24")
        srd(A, 16, 54, 55, 0, 2048 * 4096)
        A("s_mul_i32 s56, s35, 35840")
        A("s_mul_i32 s57, s21, 9216")
        A("s_add_u32 s56, s56, s57")
        A("v_lshlrev_b32 v30, 4, v1")
        A("v_add_u32 v30, s56, v30")
        srd(A, 64, 42, 43, 0, 864 * 1280)
        A("s_mul_i32 s56, s35, 4608")
        A("s_mul_i32 s57, s21, 1152")
        A("s_add_u32 s56, s56, s57")
        A("v_lshlrev_b32 v31, 4, v1")
        A("v_add_u32 v31, s56, v31")
        srd(A, 68, 40, 41, 0, 640 * 1280)
        A("s_mul_i32 s56, s35, 3584")
        A("s_mul_i32 s57, s21, 896")
        A("s_add_u32 s56, s56, s57")
        A("v_lshlrev_b32 v32, 4, v1")
        A("v_add_u32 v32, s56, v32")
    pf_plan = {1: [("w", 0), ("w", 1)], 2: [("w", 2), ("w", 3)], 3: [("w", 4), ("w", 5)], 4: [("w", 6), ("w", 7)], 5: [("w", 8), ("o", 0)], 6: [("o", 1), ("p", 0)]} if prefetch else {}
    if prefetch and pflate:
        pf_plan = {8: [("w", i) for i in range(5)], 9: [("w", i) for i in range(5, 9)] + [("o", 0), ("o", 1), ("p", 0)]}
    issued_after = []
    order = []
    for i in range(NPRE): order.append(("st", i, NPER))
    def emit_pf(s_):
        n = 0
        for kind, i in pf_plan.get(s_, []):
            if kind == "w":
                A(f"s_mov_b32 s56, {i*1024}")
                A(f"buffer_load_dwordx4 v[{40+4*(n%2)}:{43+4*(n%2)}], v30, s[16:19], s56 offen")
            elif kind == "o":
                A(f"buffer_load_dwordx4 v[{40+4*(n%2)}:{43+4*(n%2)}], v31, s[64:67], 0 offen offset:{i*1024}")
            else:
                A(f"buffer_load_dwordx4 v[{40+4*(n%2)}:{43+4*(n%2)}], v32, s[68:71], 0 offen")
            n += 1
        if n: order.append(("pf", -1, n))
    for s_ in range(NST):
        idx = [k for k, o in enumerate(order) if o[0] == "st" and o[1] == s_][0]
        younger = sum(o[2] for o in order[idx+1:])
        A(f"s_waitcnt vmcnt({min(younger, 63)})")
        A("s_barrier")
        if pp:
            if s_ + 2 < NST:
                if not nodma: issue(NSL - 1)
                order.append(("st", s_ + 2, NPER if not nodma else 0))
            emit_pf(s_)
            A("s_barrier")
            rotate()
        else:
            if s_ + D < NST:
                if not nodma: issue(D)
                order.append(("st", s_ + D, NPER if not nodma else 0))
            emit_pf(s_)
            rotate()
    if pp: A("s_barrier")
    A(f"s_branch {name}_exit")
    A.label(f"{name}_cons")
    A("s_lshr_b32 s21, s20, 2")
    A("s_lshl_b32 s29, s21, 1")
    A("s_add_u32 s22, s20, s29")
    A("s_and_b32 s22, s22, 3")
    vXb, vWb, vXc, vWc, vF, vAcc, vE = 10, 14, 16, 20, 24, 88, 24
    def Xf(buf, mb): return vF + 16 * buf + 4 * mb
    def Wf(buf, nb): return vF + 16 * buf + 8 + 4 * nb
    def acc(nb, mb): return vAcc + (nb * 2 + mb) * 16
    A("v_and_b32 v2, 31, v1")
    A("s_lshl_b32 s29, s21, 6")
    A("v_add_u32 v2, s29, v2")
    A("v_lshlrev_b32 v2, 7, v2")
    A("v_lshrrev_b32 v3, 5, v1")
    A("v_bfe_u32 v4, v1, 1, 3")
    for kk in range(4):
        A(f"v_or_b32 v5, {2*kk}, v3")
        A("v_xor_b32 v5, v5, v4")
        A(f"v_lshl_add_u32 v{vXb+kk}, v5, 4, v2")
    A("v_lshrrev_b32 v2, 5, v1")
    A("v_bfe_u32 v3, v1, 2, 2")
    A("v_lshl_add_u32 v4, v2, 3, v3")
    A("v_lshlrev_b32 v4, 7, v4")
    A("v_bfe_u32 v5, v1, 4, 1")
    A("v_lshl_add_u32 v4, v5, 5, v4")
    A("v_and_b32 v5, 1, v1")
    A("v_lshl_add_u32 v4, v5, 4, v4")
    A("v_bfe_u32 v5, v1, 1, 1")
    A("v_lshl_add_u32 v4, v5, 3, v4")
    A("s_lshl_b32 s29, s22, 13")
    A(f"s_add_u32 s29, s29, {AB}")
    A("v_add_u32 v4, s29, v4")
    A("v_lshrrev_b32 v3, 1, v3")
    for nb in range(2):
        A(f"v_xor_b32 v5, {nb}, v3")
        A(f"v_lshl_add_u32 v{vWb+nb}, v5, 6, v4")
    for i in range(64):
        A(f"v_mov_b32 v{vAcc+i}, 0")
    def reads(kk, buf):
        for mb in range(2):
            A(f"ds_read_b128 {vr(Xf(buf,mb),4)}, v{vXc+kk} offset:{mb*4096}")
        for nb in range(2):
            A(f"ds_read_b64_tr_b16 {vr(Wf(buf,nb),2)}, v{vWc+nb} offset:{kk*2048}")
            A(f"ds_read_b64_tr_b16 {vr(Wf(buf,nb)+2,2)}, v{vWc+nb} offset:{kk*2048+512}")
    def mfmas(buf):
        for nb in range(2):
            for mb in range(2):
                A(f"v_mfma_f32_32x32x16_bf16 {vr(acc(nb,mb),16)}, {vr(Wf(buf,nb),4)}, {vr(Xf(buf,mb),4)}, {vr(acc(nb,mb),16)}")
    if not pp:
        A(f"s_mov_b32 s35, {NST}")
        A.lines.append(".p2align 6")
        A.label(f"{name}_loop")
        A("s_barrier")
        for kk in range(4):
            A(f"v_add_u32 v{vXc+kk}, s{sSlot}, v{vXb+kk}")
        for nb in range(2):
            A(f"v_add_u32 v{vWc+nb}, s{sSlot}, v{vWb+nb}")
        if not nocomp:
            reads(0, 0); reads(1, 1)
            A("s_waitcnt lgkmcnt(6)"); mfmas(0); reads(2, 0)
            A("s_waitcnt lgkmcnt(6)"); mfmas(1); reads(3, 1)
            A("s_waitcnt lgkmcnt(6)"); mfmas(0)
            A("s_waitcnt lgkmcnt(0)"); mfmas(1)
        rotate()
        A("s_sub_u32 s35, s35, 1")
        A("s_cmp_lg_u32 s35, 0")
        A(f"s_cbranch_scc1 {name}_loop")
    else:
        def rdall():
            for kk in range(4):
                A(f"v_add_u32 v{vXc+kk}, s{sSlot}, v{vXb+kk}")
            for nb in range(2):
                A(f"v_add_u32 v{vWc+nb}, s{sSlot}, v{vWb+nb}")
            if nocomp: return
            reads(0, 0); reads(1, 1)
            A("s_waitcnt lgkmcnt(6)"); reads(2, 2)
            A("s_waitcnt lgkmcnt(6)"); reads(3, 3)
            A("s_waitcnt lgkmcnt(0)")
        def mmall():
            if nocomp: return
            for kk in range(4): mfmas(kk)
        A("s_cmp_eq_u32 s21, 0")
        A(f"s_cbranch_scc1 {name}_g0")
        A("s_barrier")
        A.label(f"{name}_g0")
        A(f"s_mov_b32 s35, {NST}")
        A.lines.append(".p2align 6")
        def stamp():
            if not asmlib.INSTR: return
            A("s_memtime s[86:87]")
            A("s_waitcnt lgkmcnt(0)")
            A("s_sub_u32 s86, s86, s94")
            A("s_mov_b32 m0, s85")
            A("s_add_u32 s85, s85, 1")
            A("s_nop 2")
            A("v_writelane_b32 v164, s86, m0")
        if asmlib.INSTR: A("s_mov_b32 s85, 0")
        A.label(f"{name}_loop")
        A("s_barrier")
        stamp()
        rdall()
        stamp()
        A("s_barrier")
        stamp()
        mmall()
        rotate()
        A("s_sub_u32 s35, s35, 1")
        A("s_cmp_lg_u32 s35, 0")
        A(f"s_cbranch_scc1 {name}_loop")
        A("s_cmp_eq_u32 s21, 0")
        A(f"s_cbranch_scc0 {name}_g1e")
        A("s_barrier")
        A.label(f"{name}_g1e")
    if asmlib.INSTR and pp:
        A(f"s_add_u32 s96, s46, {asmlib.WS_TS + 5*0x40000}")
        A("s_addc_u32 s97, s47, 0")
        A("s_mov_b32 s98, 0x40000")
        A("s_mov_b32 s99, 0x20000")
        A("s_lshl_b32 s100, s2, 10")
        A("s_lshl_b32 s101, s20, 7")
        A("s_add_u32 s100, s100, s101")
        A("v_lshlrev_b32 v165, 2, v1")
        A("v_add_u32 v165, s100, v165")
        A("v_cmp_gt_u32 vcc, 32, v1")
        A("s_and_saveexec_b64 s[90:91], vcc")
        A("buffer_store_dword v164, v165, s[96:99], 0 offen")
        A("s_mov_b64 exec, s[90:91]")
    ts_mark(A, 0, name, kidx, va=162, vb=163)
    if noepi: A(f"s_branch {name}_end")
    A("s_nop 15")
    A("v_and_b32 v2, 31, v1")
    A("v_lshrrev_b32 v3, 5, v1")
    A("s_cmp_ge_u32 s22, 2")
    A(f"s_cbranch_scc1 {name}_epiz")
    srd(A, 16, 46, 47, WS_QKV, QKV_SIZE)
    A("s_lshl_b32 s53, s23, 2")
    A("s_lshl_b32 s54, s21, 1")
    A("s_add_u32 s53, s53, s54")
    A("s_mul_i32 s53, s53, 4608")
    A("v_mul_u32_u24 v4, 48, v2")
    A("v_add_u32 v4, s53, v4")
    vOff, vOff2, vScale, vC0, vC1, vD, vD2 = vE, vE + 4, vE + 8, vE + 12, vE + 16, vE + 20, vE + 24
    A("s_lshl_b32 s58, s24, 4")
    A("s_lshl_b32 s59, s22, 3")
    A("s_add_u32 s58, s58, s59")
    A(f"s_mov_b32 s60, {QKV_HEAD}")
    A(f"s_mov_b32 s61, {fhex(QSCALE)}")
    A("s_mov_b32 s62, 0x3f803f80")
    A("s_movk_i32 s63, 0x3f80")
    A("s_mov_b32 s64, 0x7fff0000")
    A("s_mov_b32 s57, 52429")
    for u in range(4):
        nb, s_ = u >> 1, u & 1
        A(f"v_add_u32 v5, {4*nb+2*s_}, v3")
        A("v_add_u32 v5, s58, v5")
        A("v_mul_lo_u32 v6, v5, s57")
        A("v_lshrrev_b32 v6, 18, v6")
        A("v_mul_u32_u24 v7, 5, v6")
        A("v_sub_u32 v7, v5, v7")
        A("v_lshrrev_b32 v8, 4, v6")
        A("v_and_b32 v6, 15, v6")
        A("v_lshlrev_b32 v6, 1, v6")
        A("v_cmp_le_u32 vcc, 3, v7")
        A("s_nop 1")
        A("v_addc_co_u32 v6, vcc, 0, v6, vcc")
        A("v_cmp_le_u32 vcc, 3, v7")
        A("v_subrev_u32 v9, 2, v7")
        A("s_nop 0")
        A("v_cndmask_b32 v9, v7, v9, vcc")
        A("v_mul_lo_u32 v6, v6, s60")
        A("v_lshl_add_u32 v6, v9, 4, v6")
        A("v_cmp_eq_u32 vcc, 0, v8")
        A("v_subrev_u32 v9, 1, v8")
        A("s_nop 0")
        A("v_cndmask_b32 v9, v9, 2, vcc")
        A("v_mul_u32_u24 v9, 0x600, v9")
        A("v_add_u32 v6, v6, v9")
        A(f"v_add_u32 v{vOff+u}, v6, v4")
        A(f"v_mov_b32 v{vScale+u}, 1.0")
        A("v_mov_b32 v9, s61")
        A(f"v_cndmask_b32 v{vScale+u}, v{vScale+u}, v9, vcc")
        A("v_mov_b32 v9, s62")
        A(f"v_cndmask_b32 v{vC0+u}, v9, 0, vcc")
        A("v_mov_b32 v9, s63")
        A(f"v_cndmask_b32 v{vC1+u}, v9, 0, vcc")
        A(f"v_cmp_eq_u32 s[{66+2*u}:{67+2*u}], 2, v7")
        A(f"v_add_u32 v6, {QKV_HEAD-32}, v{vOff+u}")
        A("v_mov_b32 v9, s64")
        A(f"v_cndmask_b32 v{vOff2+u}, v9, v6, s[{66+2*u}:{67+2*u}]")
    A("s_movk_i32 s65, 4608")
    for mb in range(2):
        for u in range(4):
            nb, s_ = u >> 1, u & 1
            a = acc(nb, mb) + 8 * s_
            so = "0" if mb == 0 else "s65"
            for i in range(8):
                A(f"v_mul_f32 v{a+i}, v{a+i}, v{vScale+u}")
            for i in range(4):
                A(f"v_cvt_pk_bf16_f32 v{vD+i}, v{a+2*i}, v{a+2*i+1}")
            lab = A.newlabel(f"{name}_no2")
            A(f"s_cmp_eq_u64 s[{66+2*u}:{67+2*u}], 0")
            A(f"s_cbranch_scc1 {lab}")
            A(f"v_mov_b32 v{vD2}, v{vC0+u}")
            A(f"v_mov_b32 v{vD2+1}, v{vC1+u}")
            A(f"v_mov_b32 v{vD2+2}, v{vD+2}")
            A(f"v_mov_b32 v{vD2+3}, v{vD+3}")
            A(f"v_cndmask_b32 v{vD+2}, v{vD+2}, v{vC0+u}, s[{66+2*u}:{67+2*u}]")
            A(f"v_cndmask_b32 v{vD+3}, v{vD+3}, v{vC1+u}, s[{66+2*u}:{67+2*u}]")
            A(f"buffer_store_dwordx4 {vr(vD2,4)}, v{vOff2+u}, s[16:19], {so} offen {sf}")
            A.label(lab)
            A(f"buffer_store_dwordx4 {vr(vD,4)}, v{vOff+u}, s[16:19], {so} offen {sf}")
            A("s_nop 1")
    A(f"s_branch {name}_end")
    A.label(f"{name}_epiz")
    A("s_cmp_eq_u32 s22, 2")
    A(f"s_movk_i32 s54, {Z1_PITCH}")
    A(f"s_cselect_b32 s54, {Z2_PITCH}, s54")
    A(f"s_cselect_b32 s56, {WS_Z2 - WS_Z1}, 0")
    A(f"s_add_u32 s16, s46, {WS_Z1}")
    A("s_addc_u32 s17, s47, 0")
    A("s_add_u32 s16, s16, s56")
    A("s_addc_u32 s17, s17, 0")
    A("s_lshl_b32 s18, s54, 11")
    A("s_mov_b32 s19, 0x20000")
    A("s_lshl_b32 s53, s23, 7")
    A("s_lshl_b32 s55, s21, 6")
    A("s_add_u32 s53, s53, s55")
    A("v_add_u32 v4, s53, v2")
    A("v_mul_lo_u32 v4, v4, s54")
    A("v_lshl_add_u32 v4, v3, 4, v4")
    A("s_lshl_b32 s53, s24, 7")
    A("v_add_u32 v4, s53, v4")
    A("s_lshl_b32 s65, s54, 5")
    vC = vE
    A(f"v_mov_b32 v{vC}, {fhex(GC1)}")
    A(f"v_mov_b32 v{vC+1}, {fhex(GC1)}")
    A(f"v_mov_b32 v{vC+2}, {fhex(GC0)}")
    A(f"v_mov_b32 v{vC+3}, {fhex(GC0)}")
    A(f"v_mov_b32 v{vC+4}, 1.0")
    A(f"v_mov_b32 v{vC+5}, 1.0")
    vT = vE + 16; vD = vE + 8
    for nb in range(2):
        lab = A.newlabel(f"{name}_zskip")
        A("s_lshl_b32 s53, s24, 1")
        A(f"s_add_u32 s53, s53, {nb}")
        A("s_cmp_ge_u32 s53, 27")
        A(f"s_cbranch_scc1 {lab}")
        for mb in range(2):
            a = acc(nb, mb)
            gelu_pk(A, [a + 2 * i for i in range(8)], vT, (vC, vC + 2, vC + 4))
            for s_ in range(2):
                for i in range(4):
                    A(f"v_cvt_pk_bf16_f32 v{vD+4*s_+i}, v{a+8*s_+2*i}, v{a+8*s_+2*i+1}")
            so = "0" if mb == 0 else "s65"
            for s_ in range(2):
                A(f"buffer_store_dwordx4 {vr(vD+4*s_,4)}, v4, s[16:19], {so} offen offset:{nb*64+s_*32} {sf}")
            A("s_nop 1")
        A.label(lab)
    A.label(f"{name}_end")
    if asmlib.INSTR:
        A("s_waitcnt vmcnt(0)")
    ts_mark(A, 1, name, kidx, va=162, vb=163)
    A.label(f"{name}_exit")
    A("s_endpgm")
    return 168, 102
```

```python
from asmlib import *
import asmlib
from k1 import *
from k1b import WS_Z2, Z2_PITCH, Z2_SIZE
from k2g import gate_rows

def gen_k1c(A, name="k1_kernel", kidx=0, sf="", prefetch=True, early=True, rot4=False, notile=False):
    kernel_begin(A, name)
    NST = 10; NSL = 4; D = NSL - 1
    AB = 16384; SUB = 8192
    SLOT = AB + 3 * SUB
    A("s_cmp_ge_u32 s2, 256")
    A(f"s_cbranch_scc1 {name}_exit")
    ts_begin(A)
    A("s_load_dwordx4 s[36:39], s[0:1], 0")
    A("s_load_dwordx2 s[40:41], s[0:1], 16")
    A("s_load_dwordx4 s[52:55], s[0:1], 32")
    A("s_load_dwordx2 s[42:43], s[0:1], 56")
    A("s_load_dwordx2 s[46:47], s[0:1], 88")
    A("v_and_b32 v1, 63, v0")
    A("v_lshrrev_b32 v2, 6, v0")
    A("s_and_b32 s48, s2, 7")
    A("v_readfirstlane_b32 s20, v2")
    A("s_lshr_b32 s49, s2, 3")
    A("s_and_b32 s23, s48, 1")
    A("s_lshl_b32 s23, s23, 3")
    A("s_and_b32 s50, s49, 7")
    A("s_add_u32 s23, s23, s50")
    A("s_lshr_b32 s24, s48, 1")
    A("s_lshl_b32 s24, s24, 2")
    A("s_lshr_b32 s50, s49, 3")
    A("s_add_u32 s24, s24, s50")
    if not rot4:
        A("s_lshr_b32 s50, s48, 1")
        A("s_xor_b32 s50, s50, s48")
        A("s_and_b32 s50, s50, 1")
        A("s_mul_i32 s27, s50, 5")
    else:
        A("s_lshr_b32 s50, s48, 1")
        A("s_mul_i32 s50, s50, 5")
        A("s_add_u32 s50, s50, 1")
        A("s_lshr_b32 s50, s50, 1")
        A("s_and_b32 s51, s48, 1")
        A("s_mul_i32 s51, s51, 5")
        A("s_add_u32 s27, s50, s51")
        A("s_cmp_ge_u32 s27, 10")
        A("s_cselect_b32 s51, 10, 0")
        A("s_sub_u32 s27, s27, s51")
    sSlot = 60
    for i in range(NSL):
        A(f"s_mov_b32 s{sSlot+i}, {i*SLOT}")
    def rotate():
        A(f"s_mov_b32 s64, s{sSlot}")
        for i in range(NSL - 1):
            A(f"s_mov_b32 s{sSlot+i}, s{sSlot+i+1}")
        A(f"s_mov_b32 s{sSlot+NSL-1}, s64")
    A("s_waitcnt lgkmcnt(0)")
    A("s_cmp_lg_u32 s2, 0")
    A(f"s_cbranch_scc1 {name}_nozero")
    A("s_cmp_lg_u32 s20, 0")
    A(f"s_cbranch_scc1 {name}_nozero")
    srd(A, 16, 46, 47, WS_FLAG, FLAG_SIZE)
    A("v_lshlrev_b32 v2, 4, v1")
    for i in range(4): A(f"v_mov_b32 v{4+i}, 0")
    for g_ in range(4):
        A(f"s_movk_i32 s29, {g_*4096}")
        for i in range(4):
            A(f"buffer_store_dwordx4 v[4:7], v2, s[16:19], s29 offen offset:{i*1024}")
    A.label(f"{name}_nozero")
    A("s_cmp_eq_u32 s24, 15")
    A(f"s_cbranch_scc0 {name}_work")
    A("s_mul_i32 s29, s23, 12")
    A("s_add_u32 s29, s29, s20")
    A("s_cmp_ge_u32 s29, 182")
    A(f"s_cbranch_scc1 {name}_notile")
    A("s_mul_i32 s30, s29, 2521")
    A("s_lshr_b32 s30, s30, 16")
    A("s_mul_i32 s31, s30, 26")
    A("s_sub_u32 s31, s29, s31")
    A("s_cmp_ge_u32 s31, 14")
    A("s_cselect_b32 s32, 1, 0")
    A("s_cselect_b32 s4, s40, s42")
    A("s_cselect_b32 s5, s41, s43")
    A(f"s_mov_b32 s6, {864*1280}")
    A(f"s_cselect_b32 s6, {640*1280}, s6")
    A("s_mov_b32 s7, 0x20000")
    srd(A, 16, 46, 47, WS_WT, WT_SIZE)
    A("s_mul_i32 s33, s30, 192")
    A("s_sub_u32 s34, s31, 14")
    A("s_mul_i32 s35, s29, 12288")
    A("s_mov_b32 s56, 0x7fff0000")
    for j in range(12):
        A(f"v_add_u32 v2, {64*j}, v1")
        A("v_mul_u32_u24 v3, 5462, v2")
        A("v_lshrrev_b32 v3, 16, v3")
        A("v_mul_u32_u24 v4, 12, v3")
        A("v_sub_u32 v4, v2, v4")
        A("v_lshlrev_b32 v4, 4, v4")
        A("v_add_u32 v4, s33, v4")
        A("s_lshl_b32 s57, s31, 6")
        A("v_add_u32 v5, s57, v3")
        A("s_lshl_b32 s57, s34, 6")
        A("v_add_u32 v6, s57, v3")
        A("s_movk_i32 s57, 2731")
        A("v_mul_lo_u32 v7, v6, s57")
        A("v_lshrrev_b32 v7, 16, v7")
        A("v_mul_u32_u24 v8, 24, v7")
        A("v_sub_u32 v8, v6, v8")
        A("v_mul_u32_u24 v7, 20, v7")
        A("v_add_u32 v7, v7, v8")
        A("s_cmp_eq_u32 s32, 1")
        A("s_cselect_b64 vcc, -1, 0")
        A("v_cndmask_b32 v5, v5, v7, vcc")
        A("s_movk_i32 s57, 1280")
        A("v_mul_lo_u32 v5, v5, s57")
        A("v_add_u32 v5, v5, v4")
        A("v_cmp_le_u32 s[58:59], 20, v8")
        A("s_nop 1")
        A("s_and_b64 s[58:59], s[58:59], vcc")
        A("v_mov_b32 v9, s56")
        A("s_nop 0")
        A(f"v_cndmask_b32 v5, v5, v9, s[58:59]")
        A(f"buffer_load_dwordx4 v[{40+4*j}:{43+4*j}], v5, s[4:7], 0 offen")
    A("v_lshlrev_b32 v2, 4, v1")
    A("v_add_u32 v2, s35, v2")
    A("s_waitcnt vmcnt(0)")
    for j in range(12):
        A(f"s_movk_i32 s57, {j*1024}")
        A(f"buffer_store_dwordx4 v[{40+4*j}:{43+4*j}], v2, s[16:19], s57 offen")
    A.label(f"{name}_notile")
    A("s_cmp_ge_u32 s20, 8")
    A(f"s_cbranch_scc1 {name}_exit")
    A("s_load_dwordx2 s[34:35], s[0:1], 64")
    A("s_waitcnt lgkmcnt(0)")
    srd(A, 8, 36, 37, 0, 2048 * 1280)
    srd(A, 12, 34, 35, 0, 1280)
    srd(A, 16, 46, 47, WS_GATE, GATE_SIZE)
    A("s_lshl_b32 s22, s23, 7")
    A("s_lshl_b32 s29, s20, 4")
    A("s_add_u32 s22, s22, s29")
    gate_rows(A, 22, 1, 8, 12, 16, 2)
    A(f"s_branch {name}_exit")
    A.label(f"{name}_work")
    A("s_cmp_ge_u32 s20, 8")
    A(f"s_cbranch_scc0 {name}_cons")
    A("s_sub_u32 s21, s20, 8")
    vA, vB = 10, 14
    srd(A, 4, 36, 37, 0, 2048 * 1280)
    srd(A, 8, 38, 39, 0, 640 * 3840)
    srd(A, 12, 52, 53, 0, 640 * 3456)
    A("v_lshrrev_b32 v2, 3, v1")
    A("v_and_b32 v3, 7, v1")
    A("s_lshl_b32 s29, s23, 7")
    A("s_lshl_b32 s30, s21, 5")
    A("s_add_u32 s29, s29, s30")
    A("v_add_u32 v4, s29, v2")
    A("s_movk_i32 s30, 1280")
    A("v_mul_lo_u32 v4, v4, s30")
    A("v_lshrrev_b32 v5, 1, v2")
    for j in range(4):
        if j & 1:
            A("v_or_b32 v6, 4, v5"); A("v_xor_b32 v6, v6, v3")
        else:
            A("v_xor_b32 v6, v5, v3")
        A("v_lshl_add_u32 v6, v6, 4, v4")
        A(f"v_add_u32 v{vA+j}, {j*(8*1280-1024)}, v6")
    A("v_and_b32 v5, 2, v2")
    A("v_lshlrev_b32 v5, 1, v5")
    A("v_xor_b32 v5, v5, v3")
    A("v_lshlrev_b32 v5, 4, v5")
    A("s_lshl_b32 s29, s21, 4")
    A("v_add_u32 v4, s29, v2")
    A("s_lshl_b32 s31, s24, 8")
    A("s_lshl_b32 s32, s24, 7")
    A("s_movk_i32 s30, 3840")
    A("v_mul_lo_u32 v6, v4, s30")
    A("v_add_u32 v6, v6, v5")
    A("v_add_u32 v6, s31, v6")
    for sub in range(2):
        for i in range(2):
            A(f"v_add_u32 v{vB+2*sub+i}, {sub*128 + i*(8*3840-1024)}, v6")
    A("s_movk_i32 s30, 3456")
    A("v_mul_lo_u32 v6, v4, s30")
    A("v_add_u32 v6, v6, v5")
    A("v_add_u32 v6, s32, v6")
    for i in range(2):
        A(f"v_add_u32 v{vB+4+i}, {1728 + i*(8*3456-1024)}, v6")
    A("s_lshl_b32 s33, s21, 12")
    A("s_lshl_b32 s34, s21, 11")
    A(f"s_add_u32 s34, s34, {AB}")
    def issue(slot):
        A("s_lshl_b32 s28, s27, 7")
        A("s_mul_i32 s29, s27, 245760")
        A("s_mul_i32 s30, s27, 221184")
        A(f"s_add_u32 m0, s{sSlot+slot}, s33")
        A("s_add_u32 s27, s27, 1")
        for j in range(4):
            A(f"buffer_load_dwordx4 v{vA+j}, s[4:7], s28 offen offset:{j*1024} lds")
        for sub in range(3):
            A(f"s_add_u32 m0, s{sSlot+slot}, s34")
            if sub: A(f"s_add_u32 m0, m0, {sub*SUB}")
            A("s_nop 0")
            sr_, so = ("s[8:11]", "s29") if sub < 2 else ("s[12:15]", "s30")
            for i in range(2):
                A(f"buffer_load_dwordx4 v{vB+2*sub+i}, {sr_}, {so} offen offset:{i*1024} lds")
        A("s_cmp_eq_u32 s27, 10")
        A("s_cselect_b32 s27, 0, s27")
    NPER = 10
    order = []
    NPRE = D
    for i in range(NPRE):
        issue(i); order.append(("st", i, NPER))
    if prefetch:
        A("s_mul_i32 s35, s23, 15")
        A("s_add_u32 s35, s35, s24")
        srd(A, 16, 54, 55, 0, 2048 * 4096)
        A("s_mul_i32 s56, s35, 35840")
        A("s_mul_i32 s57, s21, 9216")
        A("s_add_u32 s56, s56, s57")
        A("v_lshlrev_b32 v30, 4, v1")
        A("v_add_u32 v30, s56, v30")
        srd(A, 68, 42, 43, 0, 864 * 1280)
        A("s_mul_i32 s56, s35, 4608")
        A("s_mul_i32 s57, s21, 1152")
        A("s_add_u32 s56, s56, s57")
        A("v_lshlrev_b32 v31, 4, v1")
        A("v_add_u32 v31, s56, v31")
        srd(A, 72, 40, 41, 0, 640 * 1280)
        A("s_mul_i32 s56, s35, 3584")
        A("s_mul_i32 s57, s21, 896")
        A("s_add_u32 s56, s56, s57")
        A("v_lshlrev_b32 v32, 4, v1")
        A("v_add_u32 v32, s56, v32")
    if prefetch:
        A("s_lshl_b32 s56, s35, 2")
        A("s_add_u32 s56, s56, s21")
        A("s_mul_i32 s57, s56, 3456")
        A("s_cmp_lt_u32 s56, 640")
        A("s_cselect_b32 s57, s57, 0x7fff0000")
        A("v_lshlrev_b32 v33, 4, v1")
        A("v_add_u32 v33, s57, v33")
    pf_plan = {7: [("z", 0), ("z", 1)], 8: [("w", i) for i in range(5)], 9: [("w", i) for i in range(5, 9)] } if prefetch else {}
    LAND = 1 if early else 0
    for s_ in range(NST):
        need = min(s_ + LAND, NST - 1)
        idx = [k for k, o in enumerate(order) if o[0] == "st" and o[1] == need][0]
        younger = sum(o[2] for o in order[idx+1:])
        A(f"s_waitcnt vmcnt({min(younger, 63)})")
        A("s_barrier")
        if s_ + D < NST:
            issue(D); order.append(("st", s_ + D, NPER))
        n = 0
        for kind, i in pf_plan.get(s_, []):
            if kind == "w":
                A(f"s_mov_b32 s56, {i*1024}")
                A(f"buffer_load_dwordx4 v[{40+4*(n%2)}:{43+4*(n%2)}], v30, s[16:19], s56 offen")
            elif kind == "z":
                A(f"buffer_load_dwordx4 v[{40+4*(n%2)}:{43+4*(n%2)}], v33, s[12:15], 0 offen offset:{i*1024}")
            elif kind == "o":
                A(f"buffer_load_dwordx4 v[{40+4*(n%2)}:{43+4*(n%2)}], v31, s[68:71], 0 offen offset:{i*1024}")
            else:
                A(f"buffer_load_dwordx4 v[{40+4*(n%2)}:{43+4*(n%2)}], v32, s[72:75], 0 offen")
            n += 1
        if n: order.append(("pf", -1, n))
        rotate()
    A(f"s_branch {name}_exit")
    A.label(f"{name}_cons")
    A("s_and_b32 s21, s20, 3")
    A("s_lshr_b32 s22, s20, 2")
    vXb, vWb, vXc, vWc, vF, vAcc, vE = 10, 14, 18, 22, 28, 60, 28
    FS = 16
    def Xf(buf): return vF + FS * buf
    def Wf(buf, nb): return vF + FS * buf + 4 + 4 * nb
    def acc(nb): return vAcc + nb * 16
    A("v_and_b32 v2, 31, v1")
    A("s_lshl_b32 s29, s21, 5")
    A("v_add_u32 v2, s29, v2")
    A("v_lshlrev_b32 v2, 7, v2")
    A("v_lshrrev_b32 v3, 5, v1")
    A("v_bfe_u32 v4, v1, 1, 3")
    for kk in range(4):
        A(f"v_or_b32 v5, {2*kk}, v3")
        A("v_xor_b32 v5, v5, v4")
        A(f"v_lshl_add_u32 v{vXb+kk}, v5, 4, v2")
    A("v_lshrrev_b32 v2, 5, v1")
    A("v_bfe_u32 v3, v1, 2, 2")
    A("v_lshl_add_u32 v4, v2, 3, v3")
    A("v_lshlrev_b32 v4, 7, v4")
    A("v_bfe_u32 v5, v1, 4, 1")
    A("v_lshl_add_u32 v4, v5, 5, v4")
    A("v_and_b32 v5, 1, v1")
    A("v_lshl_add_u32 v4, v5, 4, v4")
    A("v_bfe_u32 v5, v1, 1, 1")
    A("v_lshl_add_u32 v4, v5, 3, v4")
    A(f"v_add_u32 v4, {AB}, v4")
    A("v_lshrrev_b32 v3, 1, v3")
    A("s_lshl_b32 s29, s22, 13")
    for nb in range(2):
        A(f"v_xor_b32 v5, {nb}, v3")
        A(f"v_lshl_add_u32 v5, v5, 6, v4")
        A(f"v_add_u32 v{vWb+nb}, s29, v5")
    A("v_xor_b32 v5, s22, v3")
    A("v_lshl_add_u32 v5, v5, 6, v4")
    A(f"v_add_u32 v{vWb+2}, {2*SUB}, v5")
    for i in range(48):
        A(f"v_mov_b32 v{vAcc+i}, 0")
    def addrs(slot_idx):
        for kk in range(4):
            A(f"v_add_u32 v{vXc+kk}, s{sSlot+slot_idx}, v{vXb+kk}")
        for nb in range(3):
            A(f"v_add_u32 v{vWc+nb}, s{sSlot+slot_idx}, v{vWb+nb}")
    def reads(kk, buf):
        A(f"ds_read_b128 {vr(Xf(buf),4)}, v{vXc+kk}")
        for nb in range(3):
            A(f"ds_read_b64_tr_b16 {vr(Wf(buf,nb),2)}, v{vWc+nb} offset:{kk*2048}")
            A(f"ds_read_b64_tr_b16 {vr(Wf(buf,nb)+2,2)}, v{vWc+nb} offset:{kk*2048+512}")
    def mfmas(buf):
        for nb in range(3):
            A(f"v_mfma_f32_32x32x16_bf16 {vr(acc(nb),16)}, {vr(Wf(buf,nb),4)}, {vr(Xf(buf),4)}, {vr(acc(nb),16)}")
    A(f"s_mov_b32 s35, {NST}")
    if early:
        A("s_barrier")
        addrs(0)
        reads(0, 0)
        A.lines.append(".p2align 6")
        A.label(f"{name}_loop")
        reads(1, 1)
        A("s_waitcnt lgkmcnt(7)"); mfmas(0); reads(2, 0)
        A("s_waitcnt lgkmcnt(7)"); mfmas(1); reads(3, 1)
        A("s_waitcnt lgkmcnt(7)"); mfmas(0)
        A("s_sub_u32 s35, s35, 1")
        A("s_cmp_eq_u32 s35, 0")
        A(f"s_cbranch_scc1 {name}_last")
        rotate()
        addrs(0)
        reads(0, 0)
        A("s_waitcnt lgkmcnt(7)"); mfmas(1)
        A("s_barrier")
        A(f"s_branch {name}_loop")
        A.label(f"{name}_last")
        A("s_waitcnt lgkmcnt(0)"); mfmas(1)
    else:
        A.lines.append(".p2align 6")
        A.label(f"{name}_loop")
        A("s_barrier")
        addrs(0)
        reads(0, 0); reads(1, 1)
        A("s_waitcnt lgkmcnt(7)"); mfmas(0); reads(2, 0)
        A("s_waitcnt lgkmcnt(7)"); mfmas(1); reads(3, 1)
        A("s_waitcnt lgkmcnt(7)"); mfmas(0)
        A("s_waitcnt lgkmcnt(0)"); mfmas(1)
        rotate()
        A("s_sub_u32 s35, s35, 1")
        A("s_cmp_lg_u32 s35, 0")
        A(f"s_cbranch_scc1 {name}_loop")
    ts_mark(A, 0, name, kidx, va=162, vb=163)
    A("s_nop 15")
    A("v_and_b32 v2, 31, v1")
    A("v_lshrrev_b32 v3, 5, v1")
    srd(A, 16, 46, 47, WS_Z2, Z2_SIZE)
    A("s_lshl_b32 s53, s23, 7")
    A("s_lshl_b32 s55, s21, 5")
    A("s_add_u32 s53, s53, s55")
    A("v_add_u32 v4, s53, v2")
    A(f"s_movk_i32 s54, {Z2_PITCH}")
    A("v_mul_lo_u32 v4, v4, s54")
    A("v_lshl_add_u32 v4, v3, 4, v4")
    A("s_lshl_b32 s53, s24, 7")
    A("s_lshl_b32 s55, s22, 6")
    A("s_add_u32 s53, s53, s55")
    A("v_add_u32 v4, s53, v4")
    vC = vE; vD = vE + 8; vT = vE + 16
    lab = A.newlabel(f"{name}_zskip")
    A("s_lshl_b32 s53, s24, 1")
    A("s_add_u32 s53, s53, s22")
    A("s_cmp_ge_u32 s53, 27")
    A(f"s_cbranch_scc1 {lab}")
    A(f"v_mov_b32 v{vC}, {fhex(GC1)}")
    A(f"v_mov_b32 v{vC+1}, {fhex(GC1)}")
    A(f"v_mov_b32 v{vC+2}, {fhex(GC0)}")
    A(f"v_mov_b32 v{vC+3}, {fhex(GC0)}")
    A(f"v_mov_b32 v{vC+4}, 1.0")
    A(f"v_mov_b32 v{vC+5}, 1.0")
    a = acc(2)
    gelu_pk(A, [a + 2 * i for i in range(8)], vT, (vC, vC + 2, vC + 4))
    for s_ in range(2):
        for i in range(4):
            A(f"v_cvt_pk_bf16_f32 v{vD+4*s_+i}, v{a+8*s_+2*i}, v{a+8*s_+2*i+1}")
    for s_ in range(2):
        A(f"buffer_store_dwordx4 {vr(vD+4*s_,4)}, v4, s[16:19], 0 offen offset:{s_*32} {sf}")
    A.label(lab)
    srd(A, 16, 46, 47, WS_QKV, QKV_SIZE)
    A("s_lshl_b32 s53, s23, 2")
    A("s_add_u32 s53, s53, s21")
    A("s_mul_i32 s53, s53, 4608")
    A(f"v_mul_u32_u24 v4, {16 if PLANES else 48}, v2")
    A("v_add_u32 v4, s53, v4")
    vQ = vE + 32
    vOff, vOff2, vScale, vC0, vC1, vD, vD2 = vQ + 40, vQ + 44, vQ + 48, vQ + 52, vQ + 56, vQ + 60, vQ + 64
    vOff, vOff2, vScale, vC0, vC1, vD, vD2 = 108, 112, 116, 120, 124, 128, 132
    A("s_lshl_b32 s58, s24, 4")
    A("s_lshl_b32 s59, s22, 3")
    A("s_add_u32 s58, s58, s59")
    A(f"s_mov_b32 s60, {QKV_HEAD}")
    A(f"s_mov_b32 s61, {fhex(QSCALE)}")
    A("s_mov_b32 s62, 0x3f803f80")
    A("s_movk_i32 s63, 0x3f80")
    A("s_mov_b32 s65, 0x7fff0000")
    A("s_mov_b32 s57, 52429")
    for u in range(4):
        nb, s_ = u >> 1, u & 1
        A(f"v_add_u32 v5, {4*nb+2*s_}, v3")
        A("v_add_u32 v5, s58, v5")
        A("v_mul_lo_u32 v6, v5, s57")
        A("v_lshrrev_b32 v6, 18, v6")
        A("v_mul_u32_u24 v7, 5, v6")
        A("v_sub_u32 v7, v5, v7")
        A("v_lshrrev_b32 v8, 4, v6")
        A("v_and_b32 v6, 15, v6")
        A("v_lshlrev_b32 v6, 1, v6")
        A("v_cmp_le_u32 vcc, 3, v7")
        A("s_nop 1")
        A("v_addc_co_u32 v6, vcc, 0, v6, vcc")
        A("v_cmp_le_u32 vcc, 3, v7")
        A("v_subrev_u32 v9, 2, v7")
        A("s_nop 0")
        A("v_cndmask_b32 v9, v7, v9, vcc")
        A("v_mul_lo_u32 v6, v6, s60")
        A(f"v_lshl_add_u32 v6, v9, {9 if PLANES else 4}, v6")
        A("v_cmp_eq_u32 vcc, 0, v8")
        A("v_subrev_u32 v9, 1, v8")
        A("s_nop 0")
        A("v_cndmask_b32 v9, v9, 2, vcc")
        A("v_mul_u32_u24 v9, 0x600, v9")
        A("v_add_u32 v6, v6, v9")
        A(f"v_add_u32 v{vOff+u}, v6, v4")
        A(f"v_mov_b32 v{vScale+u}, 1.0")
        A("v_mov_b32 v9, s61")
        A(f"v_cndmask_b32 v{vScale+u}, v{vScale+u}, v9, vcc")
        A("v_mov_b32 v9, s62")
        A(f"v_cndmask_b32 v{vC0+u}, v9, 0, vcc")
        A("v_mov_b32 v9, s63")
        A(f"v_cndmask_b32 v{vC1+u}, v9, 0, vcc")
        A(f"v_cmp_eq_u32 s[{66+2*u}:{67+2*u}], 2, v7")
        A(f"v_add_u32 v6, {QKV_HEAD-(1024 if PLANES else 32)}, v{vOff+u}")
        A("v_mov_b32 v9, s65")
        A(f"v_cndmask_b32 v{vOff2+u}, v9, v6, s[{66+2*u}:{67+2*u}]")
    for u in range(4):
        nb, s_ = u >> 1, u & 1
        a = acc(nb) + 8 * s_
        for i in range(8):
            A(f"v_mul_f32 v{a+i}, v{a+i}, v{vScale+u}")
        d0 = vD + 8 * (u % 2) * 0
        for i in range(4):
            A(f"v_cvt_pk_bf16_f32 v{vD+i}, v{a+2*i}, v{a+2*i+1}")
        lab = A.newlabel(f"{name}_no2")
        A(f"s_cmp_eq_u64 s[{66+2*u}:{67+2*u}], 0")
        A(f"s_cbranch_scc1 {lab}")
        A(f"v_mov_b32 v{vD2}, v{vC0+u}")
        A(f"v_mov_b32 v{vD2+1}, v{vC1+u}")
        A(f"v_mov_b32 v{vD2+2}, v{vD+2}")
        A(f"v_mov_b32 v{vD2+3}, v{vD+3}")
        A(f"v_cndmask_b32 v{vD+2}, v{vD+2}, v{vC0+u}, s[{66+2*u}:{67+2*u}]")
        A(f"v_cndmask_b32 v{vD+3}, v{vD+3}, v{vC1+u}, s[{66+2*u}:{67+2*u}]")
        A(f"buffer_store_dwordx4 {vr(vD2,4)}, v{vOff2+u}, s[16:19], 0 offen {sf}")
        A.label(lab)
        A(f"buffer_store_dwordx4 {vr(vD,4)}, v{vOff+u}, s[16:19], 0 offen {sf}")
        A("s_nop 1")
    A.label(f"{name}_end")
    if asmlib.INSTR:
        A("s_waitcnt vmcnt(0)")
    ts_mark(A, 1, name, kidx, va=162, vb=163)
    A.label(f"{name}_exit")
    A("s_endpgm")
    return 168, 102
```

```python
from asmlib import *
import asmlib
from k1 import *
from k1b import WS_Z2, Z2_PITCH, Z2_SIZE
from k2h import ln_row_tiled

def gen_attn(A, name, kidx=1, force_fb=False, sf="", sigO=False, orec=False, yprio=0, aprio=0, doln=False):
    SLOT = 24576
    vLane = 1
    vDK = 10
    vK1b, vK2b, vVb = 11, 12, 13
    vK1c, vK2c, vVc = 14, 15, 16
    vK1n, vK2n, vVn = 17, 18, 19
    vQ1, vQ2, vNM = 20, 24, 26
    vKf, vVf, vP, vS, vO, vT = 28, 44, 60, 68, 100, 116
    def K1(b): return vKf + 8 * b
    def K2(b): return vKf + 8 * b + 4
    def Vf(b, j): return vVf + 8 * b + 4 * j
    def S(b): return vS + 16 * b
    ts_begin(A)
    A("s_load_dwordx2 s[46:47], s[0:1], 88")
    A(f"v_and_b32 v{vLane}, 63, v0")
    A("v_lshrrev_b32 v2, 6, v0")
    A("s_and_b32 s48, s2, 7")
    A("v_readfirstlane_b32 s20, v2")
    A("s_lshr_b32 s49, s2, 3")
    A("s_lshl_b32 s21, s48, 2")
    A("s_and_b32 s50, s49, 3")
    A("s_add_u32 s21, s21, s50")
    A("s_lshr_b32 s22, s49, 2")
    A("s_and_b32 s23, s21, 1")
    A(f"s_mul_i32 s24, s21, {QKV_HEAD}")
    A("s_mul_i32 s25, s20, 4608")
    A("s_add_u32 s25, s25, s24")
    A(f"v_lshlrev_b32 v2, 4, v{vLane}")
    A(f"v_add_u32 v{vDK}, s25, v2")
    A("s_mul_i32 s26, s20, 3072")
    A("s_lshl_b32 s27, s22, 3")
    A("s_add_u32 s27, s27, s20")
    A("s_mul_i32 s28, s27, 4608")
    A("s_add_u32 s28, s28, s24")
    A("s_add_u32 s28, s28, 3072")
    A(f"v_and_b32 v2, 31, v{vLane}")
    A(f"v_lshrrev_b32 v3, 5, v{vLane}")
    if PLANES:
        A("v_lshlrev_b32 v4, 4, v2")
        A("v_lshl_add_u32 v5, v3, 9, v4")
        A("v_lshl_add_u32 v6, v3, 3, v4")
        A(f"v_add_u32 v{vK2b}, 1024, v6")
    else:
        A("v_mul_u32_u24 v4, 48, v2")
        A("v_lshl_add_u32 v5, v3, 4, v4")
        A("v_lshl_add_u32 v6, v3, 3, v4")
        A(f"v_add_u32 v{vK2b}, 32, v6")
    A(f"v_mov_b32 v{vK1b}, v5")
    A("v_add_u32 v7, s28, v5")
    A(f"v_add_u32 v8, s28, v{vK2b}")
    A("s_waitcnt lgkmcnt(0)")
    srd(A, 8, 46, 47, WS_QKV, QKV_SIZE)
    def issue(chunk_s, slot_s):
        A(f"s_mul_i32 s36, s{chunk_s}, 36864")
        A(f"s_add_u32 m0, s{slot_s}, s26")
        A("s_nop 0")
        for j in range(3):
            A(f"buffer_load_dwordx4 v{vDK}, s[8:11], s36 offen offset:{j*1024} lds")
    A("s_mov_b32 s40, 0")
    A(f"s_mov_b32 s41, {SLOT}")
    A(f"s_mov_b32 s42, {2*SLOT}")
    A("s_mov_b32 s43, 0")
    A(f"buffer_load_dwordx4 {vr(vQ1,4)}, v7, s[8:11], 0 offen")
    A(f"buffer_load_dwordx2 {vr(vQ2,2)}, v8, s[8:11], 0 offen")
    issue(43, 40)
    A("s_mov_b32 s43, 1")
    issue(43, 41)
    A("s_mov_b32 s43, 2")
    A("s_mov_b32 s44, 0")
    if doln:
        srd(A, 4, 46, 47, WS_Z2, Z2_SIZE)
        srd(A, 56, 46, 47, WS_Z2N, Z2N_SIZE)
        A("s_lshl_b32 s31, s2, 3")
        A("s_add_u32 s31, s31, s20")
        ln_row_tiled(A, 31, 4, 56, 1, 100, 64, Z2_PITCH, 0, part="load")
    srd(A, 16, 46, 47, WS_O, OREC_SIZE if orec else O_SIZE)
    A(f"v_bfe_u32 v4, v{vLane}, 2, 2")
    A("v_lshl_add_u32 v4, v3, 2, v4")
    A(f"v_mul_u32_u24 v4, {16 if PLANES else 48}, v4")
    A(f"v_and_b32 v5, 3, v{vLane}")
    A(f"v_bfe_u32 v6, v{vLane}, 4, 1")
    A("v_and_b32 v7, 1, v5")
    A("v_lshlrev_b32 v7, 1, v7")
    A("v_lshrrev_b32 v8, 1, v5")
    A("v_or_b32 v7, v7, v8")
    A("v_lshlrev_b32 v7, 3, v7")
    A("s_lshl_b32 s29, s23, 3")
    A("v_add_u32 v7, s29, v7")
    A("s_add_u32 s30, s29, 32")
    A("s_cmp_eq_u32 s23, 0")
    A("s_cselect_b32 s31, 40, 0")
    A("v_mov_b32 v8, s31")
    A("v_mov_b32 v9, s30")
    A("v_cmp_eq_u32 vcc, 0, v5")
    A("s_nop 1")
    A("v_cndmask_b32 v8, v8, v9, vcc")
    A("v_cmp_eq_u32 vcc, 1, v6")
    A("s_nop 1")
    A("v_cndmask_b32 v7, v7, v8, vcc")
    if PLANES:
        A("v_lshrrev_b32 v8, 4, v7")
        A("v_lshlrev_b32 v8, 9, v8")
        A("v_and_b32 v7, 8, v7")
        A("v_add_u32 v7, v7, v8")
    A("v_add_u32 v4, v4, v7")
    A(f"v_add_u32 v{vVb}, 1536, v4")
    A("s_mov_b32 s32, 0")
    A("s_cmp_eq_u32 s23, 0")
    A("s_cselect_b32 s33, -1, 0")
    A("s_cselect_b32 s34, 0, -1")
    A("s_mov_b32 s35, 0")
    if not doln:
        for i in range(16):
            A(f"v_mov_b32 v{vO+i}, 0")
    for i in range(4, 8): A(f"v_mov_b32 v{vP+i}, 0")
    for i in range(4): A(f"v_mov_b32 v{Vf(1,1)+i}, 0")

    def rdK(buf, aK1, aK2, off):
        A(f"ds_read_b128 {vr(K1(buf),4)}, v{aK1} offset:{off}")
        A(f"ds_read_b64 {vr(K2(buf),2)}, v{aK2} offset:{off}")
    def rdV(buf, aV, off):
        for j in range(2):
            for rd in range(2):
                A(f"ds_read_b64_tr_b16 {vr(Vf(buf,j)+2*rd,2)}, v{aV} offset:{off+(16*j+8*rd)*(16 if PLANES else 48)}")
    def qk(sb, kb): A(f"v_mfma_f32_32x32x16_bf16 {vr(S(sb),16)}, {vr(K1(kb),4)}, {vr(vQ1,4)}, 0")
    def qk2(sb, kb): A(f"v_mfma_f32_32x32x8_bf16 {vr(S(sb),16)}, {vr(K2(kb),2)}, {vr(vQ2,2)}, {vr(S(sb),16)}")
    def pv(vb, j): A(f"v_mfma_f32_32x32x16_bf16 {vr(vO,16)}, {vr(Vf(vb,j),4)}, {vr(vP+4*j,4)}, {vr(vO,16)}")
    def set_specials():
        t = vT
        A(f"v_cvt_pk_bf16_f32 v{t}, v{vNM}, v{vNM}")
        A(f"v_lshlrev_b32 v{t}, 16, v{t}")
        A(f"v_sub_f32 v{t+1}, v{vNM}, v{t}")
        A(f"v_cvt_pk_bf16_f32 v{t+2}, v{t+1}, v{t+1}")
        A(f"v_and_b32 v{t+2}, 0xffff0000, v{t+2}")
        A(f"v_sub_f32 v{t+2}, v{t+1}, v{t+2}")
        A(f"v_cvt_pk_bf16_f32 v{t+3}, v{vNM}, v{t+1}")
        A(f"v_mov_b32 v{t+5}, 0")
        A(f"v_cvt_pk_bf16_f32 v{t+4}, v{t+2}, v{t+5}")
        A(f"v_cndmask_b32 v{vQ2}, v{vQ2}, v{t+3}, s[32:33]")
        A(f"v_cndmask_b32 v{vQ2+1}, v{vQ2+1}, v{t+4}, s[32:33]")
        A(f"v_cndmask_b32 v{vQ1}, v{vQ1}, v{t+3}, s[34:35]")
        A(f"v_cndmask_b32 v{vQ1+1}, v{vQ1+1}, v{t+4}, s[34:35]")
        A("s_nop 1")
    def rowmax(sb, dst):
        s = S(sb)
        A(f"v_max3_f32 v{dst}, v{s}, v{s+1}, v{s+2}")
        for i in range(3, 15, 2):
            A(f"v_max3_f32 v{dst}, v{dst}, v{s+i}, v{s+i+1}")
        A(f"v_max_f32 v{dst}, v{dst}, v{s+15}")
        A(f"v_mov_b32 v{dst+1}, v{dst}")
        A("s_nop 1")
        A(f"v_permlane32_swap_b32 v{dst}, v{dst+1}")
        A("s_nop 1")
        A(f"v_max_f32 v{dst}, v{dst}, v{dst+1}")

    A(f"s_waitcnt vmcnt({5 if doln else 3})")
    A("s_barrier")
    rdK(0, vK1b, vK2b, 0)
    rdK(1, vK1b, vK2b, 3072)
    rdV(0, vVb, 0)
    A("s_waitcnt lgkmcnt(6)")
    qk(0, 0); qk2(0, 0)
    A("s_nop 15")
    A("s_nop 3")
    rowmax(0, vT + 8)
    A(f"v_sub_f32 v{vNM}, 0, v{vT+8}")
    set_specials()
    qk(0, 0); qk2(0, 0)
    if doln:
        ln_row_tiled(A, 31, 4, 56, 1, 100, 64, Z2_PITCH, 0, part="compute")
        A("s_nop 1")
        for i in range(16):
            A(f"v_mov_b32 v{vO+i}, 0")
        srd(A, 12, 46, 47, WS_FLAG, FLAG_SIZE)
    if yprio:
        A("s_cmp_ge_u32 s20, 4")
        A(f"s_cbranch_scc0 {name}_nyp")
        A(f"s_setprio {yprio}")
        A.label(f"{name}_nyp")
    if aprio: A(f"s_setprio {aprio}")
    ts_mark(A, 0, name, kidx)
    if doln:
        A(f"s_branch {name}_loop_e")
    A.lines.append(".p2align 6")
    A.label(f"{name}_loop")
    A("s_waitcnt vmcnt(0)")
    if doln:
        A("s_cmp_lg_u32 s44, 1")
        A(f"s_cbranch_scc1 {name}_loop_e")
        A("s_lshr_b32 s30, s2, 3")
        A("s_lshl_b32 s30, s30, 7")
        A("v_mov_b32 v2, s30")
        A("v_mov_b32 v3, 1")
        A("s_mov_b64 exec, 1")
        A("buffer_atomic_add v3, v2, s[12:15], 0 offen sc1")
        A("s_mov_b64 exec, -1")
        A.label(f"{name}_loop_e")
    A("s_barrier")
    l = A.newlabel(f"{name}_noiss")
    A("s_cmp_ge_u32 s43, 8")
    A(f"s_cbranch_scc1 {l}")
    issue(43, 42)
    A("s_add_u32 s43, s43, 1")
    A.label(l)
    for (b, c, n) in ((vK1b, vK1c, vK1n), (vK2b, vK2c, vK2n), (vVb, vVc, vVn)):
        A(f"v_add_u32 v{c}, s40, v{b}")
        A(f"v_add_u32 v{n}, s41, v{b}")
    for t in range(8):
        cb, nb = t % 2, (t + 1) % 2
        s = S(cb)
        E = lambda i: A(f"v_exp_f32 v{s+i}, v{s+i}")
        C = lambda i: A(f"v_cvt_pk_bf16_f32 v{vP+i}, v{s+2*i}, v{s+2*i+1}")
        A("s_waitcnt lgkmcnt(4)")
        qk(nb, nb)
        if t + 2 < 8: rdK(cb, vK1c, vK2c, (t + 2) * 3072)
        else: rdK(cb, vK1n, vK2n, (t + 2 - 8) * 3072)
        for i in range(0, 4): E(i)
        pv(nb, 1)
        if t + 1 < 8: rdV(nb, vVc, (t + 1) * 3072)
        else: rdV(nb, vVn, 0)
        for i in range(4, 8): E(i)
        C(0); C(1)
        qk2(nb, nb)
        C(2); C(3)
        for i in range(8, 12): E(i)
        A("s_waitcnt lgkmcnt(6)")
        pv(cb, 0)
        for i in range(12, 16): E(i)
        C(4); C(5); C(6); C(7)
    A("s_mov_b32 s45, s40")
    A("s_mov_b32 s40, s41")
    A("s_mov_b32 s41, s42")
    A("s_mov_b32 s42, s45")
    A("s_add_u32 s44, s44, 1")
    A("s_cmp_lt_u32 s44, 8")
    A(f"s_cbranch_scc1 {name}_loop")
    A("s_nop 0")
    pv(1, 1)
    ts_mark(A, 1, name, kidx)
    A("s_waitcnt lgkmcnt(0)")
    A("s_nop 15")
    def get_l():
        A(f"v_mov_b32 v{vT}, v{vO+8}")
        A(f"v_mov_b32 v{vT+1}, v{vO+8}")
        A("s_nop 1")
        A(f"v_permlane32_swap_b32 v{vT}, v{vT+1}")
        A("s_nop 1")
    get_l()
    A(f"v_mov_b32 v{vT+2}, {fhex(2.0**40)}")
    A(f"v_cmp_nlt_f32 vcc, v{vT+1}, v{vT+2}")
    A(f"v_mov_b32 v{vT+3}, {fhex(2.0**-10)}")
    A(f"v_cmp_lt_f32 s[50:51], v{vT+1}, v{vT+3}")
    A("s_nop 1")
    A("s_or_b64 vcc, vcc, s[50:51]")
    if not force_fb:
        A("s_cmp_eq_u64 vcc, 0")
        A(f"s_cbranch_scc1 {name}_fin")
    A("s_mov_b32 s52, s26")
    for (b, c) in ((vK1b, vK1c), (vK2b, vK2c), (vVb, vVc)):
        A(f"v_add_u32 v{c}, s52, v{b}")
    A("s_mul_i32 s53, s20, 4608")
    A(f"v_subrev_u32 v{vK1n}, s53, v{vDK}")
    def load_tile():
        A("s_mul_i32 s36, s54, 4608")
        A("s_mov_b32 m0, s52")
        A("s_waitcnt lgkmcnt(0)")
        for j in range(3):
            A(f"buffer_load_dwordx4 v{vK1n}, s[8:11], s36 offen offset:{j*1024} lds")
        A("s_waitcnt vmcnt(0)")
    A(f"v_mov_b32 v{vT+10}, 0xff7fffff")
    A("s_mov_b32 s54, 0")
    A.label(f"{name}_fb1")
    load_tile()
    rdK(0, vK1c, vK2c, 0)
    A("s_waitcnt lgkmcnt(0)")
    qk(0, 0); qk2(0, 0)
    A("s_nop 15")
    A("s_nop 3")
    rowmax(0, vT + 8)
    A(f"v_max_f32 v{vT+10}, v{vT+10}, v{vT+8}")
    A("s_add_u32 s54, s54, 1")
    A("s_cmp_lt_u32 s54, 64")
    A(f"s_cbranch_scc1 {name}_fb1")
    A(f"v_sub_f32 v{vNM}, v{vNM}, v{vT+10}")
    set_specials()
    for i in range(16):
        A(f"v_mov_b32 v{vO+i}, 0")
    A("s_mov_b32 s54, 0")
    A.label(f"{name}_fb2")
    load_tile()
    rdK(0, vK1c, vK2c, 0)
    rdV(0, vVc, 0)
    A("s_waitcnt lgkmcnt(0)")
    qk(0, 0); qk2(0, 0)
    A("s_nop 15")
    A("s_nop 3")
    for i in range(16):
        A(f"v_exp_f32 v{S(0)+i}, v{S(0)+i}")
    A("s_nop 0")
    for i in range(8):
        A(f"v_cvt_pk_bf16_f32 v{vP+i}, v{S(0)+2*i}, v{S(0)+2*i+1}")
    A("s_nop 1")
    pv(0, 0); pv(0, 1)
    A("s_add_u32 s54, s54, 1")
    A("s_cmp_lt_u32 s54, 64")
    A(f"s_cbranch_scc1 {name}_fb2")
    A("s_nop 15")
    get_l()
    A.label(f"{name}_fin")
    A(f"v_rcp_f32 v{vT+2}, v{vT+1}")
    A("s_nop 0")
    for i in range(12):
        A(f"v_mul_f32 v{vO+i}, v{vO+i}, v{vT+2}")
    for i in range(6):
        A(f"v_cvt_pk_bf16_f32 v{vP+i}, v{vO+2*i}, v{vO+2*i+1}")
    if not orec:
        A(f"v_and_b32 v2, 31, v{vLane}")
        A(f"v_lshrrev_b32 v3, 5, v{vLane}")
        A("s_lshl_b32 s52, s27, 5")
        A("v_add_u32 v2, s52, v2")
        A("s_movk_i32 s53, 1280")
        A("v_mul_lo_u32 v2, v2, s53")
        A("s_mul_i32 s53, s21, 40")
        A("v_add_u32 v2, s53, v2")
        A("v_lshl_add_u32 v4, v3, 4, v2")
        A(f"buffer_store_dwordx4 {vr(vP,4)}, v4, s[16:19], 0 offen {sf}")
        A("v_cmp_eq_u32 vcc, 0, v3")
        A("s_and_saveexec_b64 s[52:53], vcc")
        A(f"buffer_store_dwordx2 {vr(vP+4,2)}, v2, s[16:19], 0 offen offset:32 {sf}")
    else:
        A(f"v_mov_b32 v{vP+6}, 0")
        A(f"v_mov_b32 v{vP+7}, 0")
        A(f"v_and_b32 v2, 31, v{vLane}")
        A("v_mul_u32_u24 v2, 48, v2")
        A(f"v_lshrrev_b32 v3, 5, v{vLane}")
        A("v_lshl_add_u32 v2, v3, 4, v2")
        A("v_add_u32 v2, s26, v2")
        A(f"ds_write_b128 v2, {vr(vP,4)}")
        A(f"v_and_b32 v3, 31, v{vLane}")
        A("v_mul_u32_u24 v3, 48, v3")
        A("v_add_u32 v3, s26, v3")
        A("s_mov_b32 s52, -1")
        A("s_mov_b32 s53, 0")
        A("s_mov_b64 exec, s[52:53]")
        A(f"ds_write_b128 v3, {vr(vP+4,4)} offset:32")
        A("s_mov_b64 exec, -1")
        A(f"v_lshlrev_b32 v4, 4, v{vLane}")
        A("v_add_u32 v2, s26, v4")
        A("s_waitcnt lgkmcnt(0)")
        A(f"ds_read_b128 {vr(vS,4)}, v2")
        A(f"ds_read_b128 {vr(vS+4,4)}, v2 offset:1024")
        A("s_lshl_b32 s54, s21, 6")
        A("s_add_u32 s54, s54, s27")
        A("s_mul_i32 s54, s54, 1536")
        A("v_add_u32 v4, s54, v4")
        A("s_waitcnt lgkmcnt(0)")
        A(f"buffer_store_dwordx4 {vr(vS,4)}, v4, s[16:19], 0 offen {sf}")
        A("s_mov_b64 exec, s[52:53]")
        A(f"buffer_store_dwordx4 {vr(vS+4,4)}, v4, s[16:19], 0 offen offset:1024 {sf}")
    if sigO:
        A("s_mov_b64 exec, -1")
        srd(A, 12, 46, 47, WS_FLAG, FLAG_SIZE)
        A("s_lshr_b32 s52, s27, 1")
        A("s_lshl_b32 s52, s52, 7")
        A("s_add_u32 s52, s52, 8192")
        A("v_mov_b32 v2, s52")
        A("v_mov_b32 v3, 1")
        A("s_waitcnt vmcnt(0)")
        A("s_mov_b64 exec, 1")
        A("buffer_atomic_add v3, v2, s[12:15], 0 offen sc1")
    if asmlib.INSTR:
        A("s_mov_b64 exec, -1")
        A("s_waitcnt vmcnt(0)")
    ts_mark(A, 2, name, kidx, va=124, vb=125)
    A(f"s_branch {name}_exit")
```

```python
from asmlib import *
import asmlib
from k1 import *
from gemm import Gemm
from k3 import wave_allreduce_add
from k2g import gate_rows
import k2

def ln_row_tiled(A, sRow, srdZ, srdOut, vLane, v0, sT, in_pitch, in_off, store_flags="sc1", part="all", wait0=0, mid=None):
    vIn = v0; vOut = v0 + 1; vT = v0 + 2
    vRaw = (v0 + 4 + 3) // 4 * 4
    vX = vRaw + 8
    if part in ('all', 'load'):
        A(f"s_mul_i32 s{sT}, s{sRow}, {in_pitch}")
        if in_off: A(f"s_add_u32 s{sT}, s{sT}, {in_off}")
        A(f"v_lshlrev_b32 v{vT}, 4, v{vLane}")
        A(f"v_add_u32 v{vIn}, s{sT}, v{vT}")
        A(f"v_cmp_gt_u32 s[{sT+2}:{sT+3}], 44, v{vLane}")
        for i in range(4):
            A(f"v_mov_b32 v{vRaw+4+i}, 0")
        A(f"buffer_load_dwordx4 {vr(vRaw,4)}, v{vIn}, s[{srdZ}:{srdZ+3}], 0 offen")
        A(f"s_mov_b64 s[{sT+4}:{sT+5}], exec")
        A(f"s_mov_b64 exec, s[{sT+2}:{sT+3}]")
        A(f"buffer_load_dwordx4 {vr(vRaw+4,4)}, v{vIn}, s[{srdZ}:{srdZ+3}], 0 offen offset:1024")
        A(f"s_mov_b64 exec, s[{sT+4}:{sT+5}]")
        A(f"s_lshr_b32 s{sT}, s{sRow}, 6")
        A(f"s_lshl_b32 s{sT}, s{sT}, 14")
        A(f"s_and_b32 s{sT+1}, s{sRow}, 63")
        A(f"s_lshl_b32 s{sT+1}, s{sT+1}, 8")
        A(f"s_add_u32 s{sT}, s{sT}, s{sT+1}")
        A(f"s_and_b32 s{sT+1}, s{sRow}, 3")
        A(f"s_lshl_b32 s{sT+1}, s{sT+1}, 2")
        A(f"v_and_b32 v{vT}, 15, v{vLane}")
        A(f"v_xor_b32 v{vT}, s{sT+1}, v{vT}")
        A(f"v_lshlrev_b32 v{vT}, 4, v{vT}")
        A(f"v_lshrrev_b32 v{vT+1}, 4, v{vLane}")
        A(f"v_lshlrev_b32 v{vT+1}, 19, v{vT+1}")
        A(f"v_add_u32 v{vT}, v{vT}, v{vT+1}")
        A(f"v_add_u32 v{vOut}, s{sT}, v{vT}")
    if part == 'load': return
    if mid: mid()
    A(f"s_waitcnt vmcnt({wait0})")
    x = vX
    for i in range(8):
        A(f"v_lshlrev_b32 v{x+2*i}, 16, v{vRaw+i}")
        A(f"v_and_b32 v{x+2*i+1}, 0xffff0000, v{vRaw+i}")
    s = vRaw
    A(f"v_add_f32 v{s}, v{x}, v{x+1}")
    A(f"v_add_f32 v{s+1}, v{x+2}, v{x+3}")
    for i in range(4, 16, 2):
        A(f"v_add_f32 v{s}, v{s}, v{x+i}")
        A(f"v_add_f32 v{s+1}, v{s+1}, v{x+i+1}")
    A(f"v_add_f32 v{s}, v{s}, v{s+1}")
    wave_allreduce_add(A, s, s + 1)
    A(f"v_mul_f32 v{s}, {fhex(1.0/864)}, v{s}")
    for i in range(16):
        A(f"v_sub_f32 v{x+i}, v{x+i}, v{s}")
    for i in range(8, 16):
        A(f"v_cndmask_b32 v{x+i}, 0, v{x+i}, s[{sT+2}:{sT+3}]")
    A(f"v_mul_f32 v{s}, v{x}, v{x}")
    A(f"v_mul_f32 v{s+1}, v{x+1}, v{x+1}")
    for i in range(2, 16, 2):
        A(f"v_fmac_f32 v{s}, v{x+i}, v{x+i}")
        A(f"v_fmac_f32 v{s+1}, v{x+i+1}, v{x+i+1}")
    A(f"v_add_f32 v{s}, v{s}, v{s+1}")
    wave_allreduce_add(A, s, s + 1)
    A(f"v_mov_b32 v{s+1}, {fhex(1e-5)}")
    A(f"v_fmac_f32 v{s+1}, {fhex(1.0/864)}, v{s}")
    A(f"v_rsq_f32 v{s+1}, v{s+1}")
    A("s_nop 0")
    for i in range(16):
        A(f"v_mul_f32 v{x+i}, v{x+i}, v{s+1}")
    for i in range(8):
        A(f"v_cvt_pk_bf16_f32 v{s+i}, v{x+2*i}, v{x+2*i+1}")
    A(f"buffer_store_dwordx4 {vr(vRaw,4)}, v{vOut}, s[{srdOut}:{srdOut+3}], 0 offen {store_flags}")
    A(f"s_mov_b64 exec, s[{sT+2}:{sT+3}]")
    A(f"s_mov_b32 s{sT}, {4*32*16384}")
    A(f"buffer_store_dwordx4 {vr(vRaw+4,4)}, v{vOut}, s[{srdOut}:{srdOut+3}], s{sT} offen {store_flags}")
    A(f"s_mov_b64 exec, s[{sT+4}:{sT+5}]")

def g_role(A, name, kidx, lnprio=2, lprio=1, cprio=1, eprio=1, zin_pitch=3456, zin_off=1728, zin_base=WS_Z, zin_size=Z_SIZE):
    NZ, NS, R = 10, 32, 4
    NT = NZ + NS
    SLOT = 24576
    A("s_sub_u32 s2, s2, 256")
    ts_begin(A)
    A("s_load_dwordx2 s[36:37], s[0:1], 0")
    A("s_load_dwordx4 s[40:43], s[0:1], 32")
    A("s_load_dwordx2 s[38:39], s[0:1], 48")
    A("s_load_dwordx2 s[44:45], s[0:1], 80")
    A("s_load_dwordx2 s[46:47], s[0:1], 88")
    A("s_load_dwordx2 s[34:35], s[0:1], 64")
    A("v_and_b32 v1, 63, v0")
    A("v_lshrrev_b32 v2, 6, v0")
    A("s_and_b32 s48, s2, 7")
    A("v_readfirstlane_b32 s20, v2")
    A("s_lshr_b32 s49, s2, 3")
    A("s_lshl_b32 s23, s48, 2")
    A("s_and_b32 s50, s49, 3")
    A("s_add_u32 s23, s23, s50")
    A("s_lshr_b32 s24, s49, 2")
    A("s_and_b32 s21, s20, 3")
    A("s_lshl_b32 s27, s23, 6")
    A("s_lshl_b32 s28, s24, 8")
    A("s_waitcnt lgkmcnt(0)")
    srd(A, 12, 46, 47, WS_FLAG, FLAG_SIZE)
    A("s_cmp_ge_u32 s20, 4")
    A(f"s_cbranch_scc0 {name}_g_cons")
    A("s_cmp_eq_u32 s24, 7")
    A(f"s_cbranch_scc1 {name}_exit")
    if lprio: A(f"s_setprio {lprio}")
    vA1, vA2, vB1, vB2, vWA, vWB, vPo, vPd = 112, 114, 116, 120, 121, 122, 123, 124
    vSt = 16
    def buf(b): return vSt + 24 * (b % R)
    srd(A, 4, 36, 37, 0, 2048 * 1280)
    srd(A, 8, 40, 41, 0, 640 * 3456)
    srd(A, 60, 42, 43, 0, 2048 * 4096)
    srd(A, 64, 46, 47, WS_Z2N, Z2N_SIZE)
    sOA, sOB = 69, 70
    A("v_lshrrev_b32 v2, 3, v1")
    A("v_and_b32 v3, 7, v1")
    A("s_lshl_b32 s29, s21, 4")
    A("s_add_u32 s29, s29, s27")
    A("v_add_u32 v4, s29, v2")
    A("v_lshrrev_b32 v5, 1, v2")
    for j in range(2):
        if j:
            A("v_or_b32 v6, 4, v5"); A("v_xor_b32 v6, v6, v3")
        else:
            A("v_xor_b32 v6, v5, v3")
        A("v_lshlrev_b32 v6, 4, v6")
        A(f"v_add_u32 v7, {8*j}, v4")
        A("s_movk_i32 s30, 1280")
        A("v_mul_lo_u32 v8, v7, s30")
        A(f"v_add_u32 v{vA1+j}, v8, v6")
        A("v_lshlrev_b32 v8, 12, v7")
        A(f"v_add_u32 v{vA2+j}, v8, v6")
    A("v_lshrrev_b32 v2, 4, v1")
    A("v_and_b32 v3, 15, v1")
    A("v_lshlrev_b32 v5, 2, v2")
    A("v_xor_b32 v3, v3, v5")
    A("s_lshl_b32 s29, s21, 4")
    A("v_add_u32 v4, s29, v2")
    A("s_movk_i32 s30, 3456")
    A("v_mul_lo_u32 v4, v4, s30")
    A("v_lshl_add_u32 v4, v3, 4, v4")
    A(f"v_add_u32 v{vB1}, s28, v4")
    for j in range(1, 4):
        A(f"v_add_u32 v{vB1+j}, {j*4*3456}, v{vB1}")
    A("s_lshl_b32 s29, s24, 19")
    A("s_lshl_b32 s30, s21, 12")
    A("s_add_u32 s29, s29, s30")
    A("v_lshlrev_b32 v2, 4, v1")
    A(f"v_add_u32 v{vB2}, s29, v2")
    A("s_lshl_b32 s29, s21, 11")
    A(f"v_add_u32 v{vWA}, s29, v2")
    A("s_add_u32 s30, s30, 8192")
    A(f"v_add_u32 v{vWB}, s30, v2")
    A(f"v_and_b32 v{vPo}, 31, v1")
    A(f"v_lshlrev_b32 v{vPo}, 7, v{vPo}")
    def loads1(stage):
        b = buf(stage)
        A(f"s_mov_b32 s{sOA}, {stage*128}")
        A(f"s_mov_b32 s{sOB}, {stage*64*3456}")
        for j in range(2):
            A(f"buffer_load_dwordx4 {vr(b+4*j,4)}, v{vA1+j}, s[4:7], s{sOA} offen")
        for j in range(4):
            A(f"buffer_load_dwordx4 {vr(b+8+4*j,4)}, v{vB1+j}, s[8:11], s{sOB} offen")
    def loads2(b):
        for j in range(2):
            A(f"buffer_load_dwordx4 {vr(b+4*j,4)}, v{vA2+j}, s[60:63], s{sOA} offen")
        for j in range(4):
            A(f"buffer_load_dwordx4 {vr(b+8+4*j,4)}, v{vB2}, s[64:67], s{sOB} offen offset:{j*1024} sc1")
        A(f"s_add_u32 s{sOA}, s{sOA}, 128")
        A(f"s_add_u32 s{sOB}, s{sOB}, 16384")
    def writes(i):
        b = buf(i); so = (i % 2) * SLOT
        for j in range(2):
            A(f"ds_write_b128 v{vWA}, {vr(b+4*j,4)} offset:{so + j*1024}")
        for j in range(4):
            A(f"ds_write_b128 v{vWB}, {vr(b+8+4*j,4)} offset:{so + j*1024}")
        A("s_waitcnt lgkmcnt(0)")
    def bar():
        if lprio: A("s_setprio 0")
        A("s_barrier")
        if lprio: A(f"s_setprio {lprio}")
    for st in range(R):
        loads1(st)
    extra = 0
    for i in range(6):
        younger = 18 + (1 if i >= 4 else 0)
        A(f"s_waitcnt vmcnt({younger})")
        writes(i)
        loads1(i + 4)
        if i == 3:
            A(f"buffer_load_dword v{vPd}, v{vPo}, s[12:15], 0 offen sc1")
        if i == 5:
            A("s_waitcnt vmcnt(12)")
            A(f"v_cmp_le_u32 vcc, 32, v{vPd}")
            A("s_nop 3")
            A("s_cmp_eq_u64 vcc, -1")
            A(f"s_cbranch_scc1 {name}_g_polled")
            A("s_movk_i32 s32, 0x4000")
            A.label(f"{name}_g_poll")
            A(f"buffer_load_dword v{vPd}, v{vPo}, s[12:15], 0 offen sc1")
            A("s_waitcnt vmcnt(0)")
            A(f"v_cmp_le_u32 vcc, 32, v{vPd}")
            A("s_nop 3")
            A("s_cmp_eq_u64 vcc, -1")
            A(f"s_cbranch_scc1 {name}_g_polled")
            A("s_sub_u32 s32, s32, 1")
            A("s_cmp_eq_u32 s32, 0")
            A(f"s_cbranch_scc1 {name}_g_polled")
            A("s_sleep 1")
            A(f"s_branch {name}_g_poll")
            A.label(f"{name}_g_polled")
        bar()
    A(f"s_mov_b32 s{sOA}, 0")
    A(f"s_mov_b32 s{sOB}, 0")
    A("s_mov_b32 s68, 8")
    A.label(f"{name}_g_lloop")
    for u in range(4):
        i = 6 + u
        A("s_waitcnt vmcnt(18)")
        writes(i)
        loads2(buf(i))
        bar()
    A("s_sub_u32 s68, s68, 1")
    A("s_cmp_lg_u32 s68, 0")
    A(f"s_cbranch_scc1 {name}_g_lloop")
    for i in range(38, 42):
        A(f"s_waitcnt vmcnt({(41-i)*6})")
        writes(i)
        bar()
    A(f"s_branch {name}_exit")
    A.label(f"{name}_g_cons")
    if lnprio: A(f"s_setprio {lnprio}")
    srd(A, 8, 46, 47, zin_base, zin_size)
    srd(A, 16, 46, 47, WS_Z2N, Z2N_SIZE)
    ln_two_rows(A, name, zin_pitch, zin_off)
    A("s_waitcnt vmcnt(0)")
    A("s_lshr_b32 s28, s2, 3")
    A("s_lshl_b32 s28, s28, 7")
    A("v_mov_b32 v2, s28")
    A("v_mov_b32 v3, 1")
    A("s_mov_b64 exec, 1")
    A("buffer_atomic_add v3, v2, s[12:15], 0 offen sc1")
    A("s_mov_b64 exec, -1")
    A.label(f"{name}_g_noflag")
    A("s_lshl_b32 s28, s24, 8")
    A("s_setprio 0")
    ts_mark(A, 0, name, kidx + 1)
    A("s_cmp_lg_u32 s24, 7")
    A(f"s_cbranch_scc1 {name}_g_gemm")
    srd(A, 8, 36, 37, 0, 2048 * 1280)
    srd(A, 12, 34, 35, 0, 1280)
    srd(A, 16, 46, 47, WS_GATE, GATE_SIZE)
    A("s_lshl_b32 s22, s23, 6")
    A("s_lshl_b32 s29, s21, 4")
    A("s_add_u32 s22, s22, s29")
    gate_rows(A, 22, 1, 8, 12, 16, 2)
    A(f"s_branch {name}_exit")
    A.label(f"{name}_g_gemm")
    G = Gemm(A, 4, 64, 2, 2, 1, 2, 2, 0, 10, 60, 21, 22, 29, 1)
    A("s_lshr_b32 s22, s21, 1")
    A("s_and_b32 s29, s21, 1")
    G.setup_reads()
    vAcc = (G.vend + 3) // 4 * 4
    def acc1(nb, mb): return vAcc + 16 * nb
    def acc2(nb, mb): return vAcc + 32 + 16 * nb
    for i in range(64):
        A(f"v_mov_b32 v{vAcc+i}, 0")
    def reads(kk, fb, so):
        A(f"ds_read_b128 {vr(G.Xf(fb,0),4)}, v{G.vXb+kk} offset:{so}")
        for nb in range(2):
            A(f"ds_read_b64_tr_b16 {vr(G.Wf(fb,nb),2)}, v{G.vWb+nb} offset:{so+kk*4096}")
            A(f"ds_read_b64_tr_b16 {vr(G.Wf(fb,nb)+2,2)}, v{G.vWb+nb} offset:{so+kk*4096+1024}")
    def cstep(acc, slot):
        so = slot * SLOT
        A("s_barrier")
        if cprio: A(f"s_setprio {cprio}")
        reads(0, 0, so); reads(1, 1, so)
        A("s_waitcnt lgkmcnt(5)"); G.mfmas(0, acc); reads(2, 0, so)
        A("s_waitcnt lgkmcnt(5)"); G.mfmas(1, acc); reads(3, 1, so)
        A("s_waitcnt lgkmcnt(5)"); G.mfmas(0, acc)
        A("s_waitcnt lgkmcnt(0)"); G.mfmas(1, acc)
        if cprio: A("s_setprio 0")
    A("s_mov_b32 s68, 5")
    A.lines.append(".p2align 6")
    A.label(f"{name}_g_c1")
    cstep(acc1, 0); cstep(acc1, 1)
    A("s_sub_u32 s68, s68, 1")
    A("s_cmp_lg_u32 s68, 0")
    A(f"s_cbranch_scc1 {name}_g_c1")
    ts_mark(A, 1, name, kidx + 1)
    vE = vAcc + 64
    srd(A, 12, 38, 39, 0, 4096)
    srd(A, 16, 46, 47, WS_U, U_SIZE)
    A("v_and_b32 v2, 31, v1")
    A("v_lshrrev_b32 v3, 5, v1")
    A("s_lshl_b32 s33, s22, 5")
    A("s_add_u32 s33, s33, s27")
    A("v_add_u32 v2, s33, v2")
    A("v_lshlrev_b32 v4, 1, v2")
    A(f"buffer_load_ushort v{vE}, v4, s[12:15], 0 offen")
    A("s_mov_b32 s68, 16")
    A.lines.append(".p2align 6")
    A.label(f"{name}_g_c2")
    cstep(acc2, 0); cstep(acc2, 1)
    A("s_sub_u32 s68, s68, 1")
    A("s_cmp_lg_u32 s68, 0")
    A(f"s_cbranch_scc1 {name}_g_c2")
    ts_mark(A, 2, name, kidx + 1)
    if eprio: A(f"s_setprio {eprio}")
    A("s_lshl_b32 s31, s29, 7")
    A("s_add_u32 s31, s31, s28")
    A(f"s_movk_i32 s32, {U_PITCH}")
    A("v_mul_lo_u32 v6, v2, s32")
    A("v_lshl_add_u32 v6, v3, 4, v6")
    A("v_add_u32 v6, s31, v6")
    vC = 10
    A(f"v_mov_b32 v{vC}, {fhex(GC1)}")
    A(f"v_mov_b32 v{vC+1}, {fhex(GC1)}")
    A(f"v_mov_b32 v{vC+2}, {fhex(GC0)}")
    A(f"v_mov_b32 v{vC+3}, {fhex(GC0)}")
    A(f"v_mov_b32 v{vC+4}, 1.0")
    A(f"v_mov_b32 v{vC+5}, 1.0")
    A("s_waitcnt vmcnt(0)")
    A(f"v_lshlrev_b32 v{vE}, 16, v{vE}")
    A("s_nop 7")
    vT = G.vF
    for nb in range(2):
        a1 = acc1(nb, 0); a2 = acc2(nb, 0)
        gelu_pk(A, [a1 + 2 * i for i in range(8)], vT, (vC, vC + 2, vC + 4))
        for i in range(16):
            A(f"v_add_f32 v{a2+i}, v{a2+i}, v{vE}")
        for i in range(8):
            A(f"v_pk_mul_f32 {vr(a1+2*i,2)}, {vr(a1+2*i,2)}, {vr(a2+2*i,2)}")
        if nb == 1:
            lab = A.newlabel(f"{name}_nz")
            A("s_cmp_eq_u32 s24, 6")
            A("s_cselect_b32 s33, s29, 0")
            A("s_cmp_eq_u32 s33, 0")
            A(f"s_cbranch_scc1 {lab}")
            for i in range(16):
                A(f"v_mov_b32 v{a1+i}, 0")
            A.label(lab)
        for s_ in range(2):
            d = vT + 16 + 4 * s_
            for i in range(4):
                A(f"v_cvt_pk_bf16_f32 v{d+i}, v{a1+8*s_+2*i}, v{a1+8*s_+2*i+1}")
            A(f"buffer_store_dwordx4 {vr(d,4)}, v6, s[16:19], 0 offen offset:{nb*64+s_*32}")
        A("s_nop 1")
    if asmlib.INSTR:
        A("s_waitcnt vmcnt(0)")
    ts_mark(A, 3, name, kidx + 1)
    A(f"s_branch {name}_exit")

def ln_two_rows(A, name, in_pitch, in_off):
    sT = 52
    rows = []
    for rr in range(2):
        v0 = 4 + 36 * rr
        vIn, vOut, vT = v0, v0 + 1, v0 + 2
        vRaw = (v0 + 4 + 3) // 4 * 4
        rows.append((vIn, vOut, vT, vRaw, vRaw + 8))
    A(f"v_cmp_gt_u32 s[{sT+2}:{sT+3}], 44, v1")
    A(f"s_mov_b64 s[{sT+4}:{sT+5}], exec")
    for rr, (vIn, vOut, vT, vRaw, vX) in enumerate(rows):
        sRow = 30 + rr
        A(f"s_lshl_b32 s{sRow}, s2, 3")
        A(f"s_lshl_b32 s{sT}, s21, 1")
        A(f"s_add_u32 s{sRow}, s{sRow}, s{sT}")
        if rr: A(f"s_add_u32 s{sRow}, s{sRow}, 1")
        A(f"s_mul_i32 s{sT}, s{sRow}, {in_pitch}")
        if in_off: A(f"s_add_u32 s{sT}, s{sT}, {in_off}")
        A(f"v_lshlrev_b32 v{vT}, 4, v1")
        A(f"v_add_u32 v{vIn}, s{sT}, v{vT}")
        for i in range(4):
            A(f"v_mov_b32 v{vRaw+4+i}, 0")
        A(f"buffer_load_dwordx4 {vr(vRaw,4)}, v{vIn}, s[8:11], 0 offen")
        A(f"s_mov_b64 exec, s[{sT+2}:{sT+3}]")
        A(f"buffer_load_dwordx4 {vr(vRaw+4,4)}, v{vIn}, s[8:11], 0 offen offset:1024")
        A(f"s_mov_b64 exec, s[{sT+4}:{sT+5}]")
    for rr, (vIn, vOut, vT, vRaw, vX) in enumerate(rows):
        sRow = 30 + rr
        A(f"s_lshr_b32 s{sT}, s{sRow}, 6")
        A(f"s_lshl_b32 s{sT}, s{sT}, 14")
        A(f"s_and_b32 s{sT+1}, s{sRow}, 63")
        A(f"s_lshl_b32 s{sT+1}, s{sT+1}, 8")
        A(f"s_add_u32 s{sT}, s{sT}, s{sT+1}")
        A(f"s_and_b32 s{sT+1}, s{sRow}, 3")
        A(f"s_lshl_b32 s{sT+1}, s{sT+1}, 2")
        A(f"v_and_b32 v{vT}, 15, v1")
        A(f"v_xor_b32 v{vT}, s{sT+1}, v{vT}")
        A(f"v_lshlrev_b32 v{vT}, 4, v{vT}")
        A(f"v_lshrrev_b32 v{vT+1}, 4, v1")
        A(f"v_lshlrev_b32 v{vT+1}, 19, v{vT+1}")
        A(f"v_add_u32 v{vT}, v{vT}, v{vT+1}")
        A(f"v_add_u32 v{vOut}, s{sT}, v{vT}")
    A("s_waitcnt vmcnt(0)")
    def both(f):
        for r_ in rows: f(*r_)
    def unpack(vIn, vOut, vT, s, x):
        for i in range(8):
            A(f"v_lshlrev_b32 v{x+2*i}, 16, v{s+i}")
            A(f"v_and_b32 v{x+2*i+1}, 0xffff0000, v{s+i}")
        A(f"v_add_f32 v{s}, v{x}, v{x+1}")
        A(f"v_add_f32 v{s+1}, v{x+2}, v{x+3}")
        for i in range(4, 16, 2):
            A(f"v_add_f32 v{s}, v{s}, v{x+i}")
            A(f"v_add_f32 v{s+1}, v{s+1}, v{x+i+1}")
        A(f"v_add_f32 v{s}, v{s}, v{s+1}")
    both(unpack)
    def red2():
        (_, _, _, s0, _), (_, _, _, s1, _) = rows
        for sh in (8, 4, 2, 1):
            A("s_nop 0")
            A(f"v_add_f32_dpp v{s0}, v{s0}, v{s0} row_ror:{sh} row_mask:0xf bank_mask:0xf")
            A(f"v_add_f32_dpp v{s1}, v{s1}, v{s1} row_ror:{sh} row_mask:0xf bank_mask:0xf")
        for op in ("v_permlane16_swap_b32", "v_permlane32_swap_b32"):
            A(f"v_mov_b32 v{s0+1}, v{s0}")
            A(f"v_mov_b32 v{s1+1}, v{s1}")
            A("s_nop 1")
            A(f"{op} v{s0}, v{s0+1}")
            A(f"{op} v{s1}, v{s1+1}")
            A("s_nop 1")
            A(f"v_add_f32 v{s0}, v{s0}, v{s0+1}")
            A(f"v_add_f32 v{s1}, v{s1}, v{s1+1}")
    A("s_nop 1")
    red2()
    def center(vIn, vOut, vT, s, x):
        A(f"v_mul_f32 v{s}, {fhex(1.0/864)}, v{s}")
        for i in range(16):
            A(f"v_sub_f32 v{x+i}, v{x+i}, v{s}")
        for i in range(8, 16):
            A(f"v_cndmask_b32 v{x+i}, 0, v{x+i}, s[{sT+2}:{sT+3}]")
        A(f"v_mul_f32 v{s}, v{x}, v{x}")
        A(f"v_mul_f32 v{s+1}, v{x+1}, v{x+1}")
        for i in range(2, 16, 2):
            A(f"v_fmac_f32 v{s}, v{x+i}, v{x+i}")
            A(f"v_fmac_f32 v{s+1}, v{x+i+1}, v{x+i+1}")
        A(f"v_add_f32 v{s}, v{s}, v{s+1}")
    both(center)
    A("s_nop 1")
    red2()
    def fin(vIn, vOut, vT, s, x):
        A(f"v_mov_b32 v{s+1}, {fhex(1e-5)}")
        A(f"v_fmac_f32 v{s+1}, {fhex(1.0/864)}, v{s}")
        A(f"v_rsq_f32 v{s+1}, v{s+1}")
        A("s_nop 0")
        for i in range(16):
            A(f"v_mul_f32 v{x+i}, v{x+i}, v{s+1}")
        for i in range(8):
            A(f"v_cvt_pk_bf16_f32 v{s+i}, v{x+2*i}, v{x+2*i+1}")
        A(f"buffer_store_dwordx4 {vr(s,4)}, v{vOut}, s[16:19], 0 offen sc1")
        A(f"s_mov_b64 exec, s[{sT+2}:{sT+3}]")
        A(f"s_mov_b32 s{sT}, {4*32*16384}")
        A(f"buffer_store_dwordx4 {vr(s+4,4)}, v{vOut}, s[16:19], s{sT} offen sc1")
        A(f"s_mov_b64 exec, s[{sT+4}:{sT+5}]")
    both(fin)

def gen_fused(A, name="k2_kernel", lnprio=2, lprio=1, cprio=1, eprio=1, noa=False, **kw):
    kernel_begin(A, name)
    A("s_cmp_ge_u32 s2, 512")
    A(f"s_cbranch_scc1 {name}_gexit")
    A("s_cmp_ge_u32 s2, 256")
    A(f"s_cbranch_scc1 {name}_grole")
    if noa: A("s_endpgm")
    nv, ns = k2.gen_attn(A, name, body_only=True, **kw)
    A.label(f"{name}_grole")
    g_role(A, name, 1, lnprio, lprio, cprio, eprio)
    A.label(f"{name}_gexit")
    A("s_endpgm")
    return 128, 102
```

```python
from asmlib import *
import asmlib
from k1 import *
from k1b import WS_Z1, Z1_PITCH, Z1_SIZE, WS_Z2, Z2_PITCH, Z2_SIZE
from gemm import Gemm
from k2g import gate_rows
from k2h import ln_row_tiled
import k2a

def g_role(A, name, kidx, lnprio=2, lprio=1, cprio=1, eprio=1, nslots=3, psleep=8):
    NS = 32
    SLOT = 24576
    D = nslots - 1
    A("s_sub_u32 s2, s2, 256")
    ts_begin(A)
    A("s_load_dwordx2 s[36:37], s[0:1], 0")
    A("s_load_dwordx4 s[40:43], s[0:1], 40")
    A("s_load_dwordx2 s[46:47], s[0:1], 88")
    A("s_load_dwordx2 s[34:35], s[0:1], 64")
    if lnprio: A(f"s_setprio {lnprio}")
    A("v_and_b32 v1, 63, v0")
    A("v_lshrrev_b32 v2, 6, v0")
    A("s_and_b32 s48, s2, 7")
    A("v_readfirstlane_b32 s20, v2")
    A("s_lshr_b32 s49, s2, 3")
    A("s_lshl_b32 s23, s48, 2")
    A("s_and_b32 s50, s49, 3")
    A("s_add_u32 s23, s23, s50")
    A("s_lshr_b32 s24, s49, 2")
    A("s_and_b32 s21, s20, 3")
    A("s_lshl_b32 s27, s23, 6")
    A("s_waitcnt lgkmcnt(0)")
    srd(A, 12, 46, 47, WS_FLAG, FLAG_SIZE)
    srd(A, 8, 46, 47, WS_Z2, Z2_SIZE)
    srd(A, 16, 46, 47, WS_Z2N, Z2N_SIZE)
    A("s_lshl_b32 s22, s2, 3")
    A("s_add_u32 s22, s22, s20")
    ln_row_tiled(A, 22, 8, 16, 1, 2, 52, Z2_PITCH, 0)
    A("s_waitcnt vmcnt(0)")
    A("s_setprio 0")
    A("s_barrier")
    A("s_cmp_lg_u32 s20, 0")
    A(f"s_cbranch_scc1 {name}_g_noflag")
    A("s_lshr_b32 s28, s2, 3")
    A("s_lshl_b32 s28, s28, 7")
    A("v_mov_b32 v2, s28")
    A("v_mov_b32 v3, 1")
    A("s_mov_b64 exec, 1")
    A("buffer_atomic_add v3, v2, s[12:15], 0 offen sc1")
    A("s_mov_b64 exec, -1")
    A.label(f"{name}_g_noflag")
    ts_mark(A, 0, name, kidx + 1)
    A("s_lshl_b32 s28, s24, 8")
    A("s_cmp_lg_u32 s24, 7")
    A(f"s_cbranch_scc1 {name}_g_gemm")
    A("s_cmp_ge_u32 s20, 4")
    A(f"s_cbranch_scc1 {name}_exit")
    srd(A, 8, 36, 37, 0, 2048 * 1280)
    srd(A, 12, 34, 35, 0, 1280)
    srd(A, 16, 46, 47, WS_GATE, GATE_SIZE)
    A("s_lshl_b32 s22, s23, 6")
    A("s_lshl_b32 s29, s21, 4")
    A("s_add_u32 s22, s22, s29")
    gate_rows(A, 22, 1, 8, 12, 16, 2)
    A(f"s_branch {name}_exit")
    A.label(f"{name}_g_gemm")
    G = Gemm(A, 4, 64, 2, 2, 1, 2, nslots, 0, 10, 60, 21, 22, 29, 1)
    A("s_lshr_b32 s22, s21, 1")
    A("s_and_b32 s29, s21, 1")
    G.init_slots()
    sOA, sOB = G.sOffA, G.sOffB
    A("s_cmp_ge_u32 s20, 4")
    A(f"s_cbranch_scc0 {name}_g_cons")
    vA, vB = 10, 12
    G.setup_dma_a(vA, 27, 4096)
    A("s_lshl_b32 s30, s24, 19")
    A("s_lshl_b32 s31, s21, 12")
    A("s_add_u32 s30, s30, s31")
    A("v_lshlrev_b32 v2, 4, v1")
    A(f"v_add_u32 v{vB}, s30, v2")
    A(f"s_add_u32 s{G.sM0B}, s31, {G.ABYTES}")
    srd(A, 8, 40, 41, 0, 2048 * 4096)
    srd(A, 4, 46, 47, WS_Z2N, Z2N_SIZE)
    if lprio: A(f"s_setprio {lprio}")
    def iss_a(slot):
        G.issue_a(slot, 8, vA, sOA)
        A(f"s_add_u32 s{sOA}, s{sOA}, 128")
    def iss_b(slot):
        A(f"s_add_u32 m0, s{G.sSlot+slot}, s{G.sM0B}")
        A("s_nop 0")
        for j in range(4):
            A(f"buffer_load_dwordx4 v{vB}, s[4:7], s{sOB} offen offset:{j*1024} sc1 lds")
        A(f"s_add_u32 s{sOB}, s{sOB}, 16384")
    A(f"s_mov_b32 s{sOA}, 0")
    A(f"s_mov_b32 s{sOB}, 0")
    for i in range(D): iss_a(i)
    A("s_cmp_lg_u32 s20, 4")
    A(f"s_cbranch_scc1 {name}_g_nopoll")
    A("v_and_b32 v2, 31, v1")
    A("v_lshlrev_b32 v2, 7, v2")
    A("s_movk_i32 s32, 0x4000")
    A.label(f"{name}_g_poll")
    A("buffer_load_dword v3, v2, s[12:15], 0 offen sc1")
    A("s_waitcnt vmcnt(0)")
    A("v_cmp_le_u32 vcc, 8, v3")
    A("s_nop 3")
    A("s_cmp_eq_u64 vcc, -1")
    A(f"s_cbranch_scc1 {name}_g_polled")
    A("s_sub_u32 s32, s32, 1")
    A("s_cmp_eq_u32 s32, 0")
    A(f"s_cbranch_scc1 {name}_g_polled")
    A(f"s_sleep {psleep}")
    A(f"s_branch {name}_g_poll")
    A.label(f"{name}_g_polled")
    A.label(f"{name}_g_nopoll")
    A("s_setprio 0")
    A("s_barrier")
    if lprio: A(f"s_setprio {lprio}")
    for i in range(D): iss_b(i)
    def lstep(wait, issue):
        A(f"s_waitcnt vmcnt({wait})")
        if lprio: A("s_setprio 0")
        A("s_barrier")
        if lprio: A(f"s_setprio {lprio}")
        if issue:
            iss_a(D); iss_b(D)
        G.rotate()
    for s_ in range(D):
        lstep(4 * (D - 1 - s_) + 6 * s_, True)
    A(f"s_mov_b32 s{G.send}, {NS - 2*D}")
    A.label(f"{name}_g_ll")
    lstep(6 * (D - 1), True)
    A(f"s_sub_u32 s{G.send}, s{G.send}, 1")
    A(f"s_cmp_lg_u32 s{G.send}, 0")
    A(f"s_cbranch_scc1 {name}_g_ll")
    for j in range(D):
        lstep(6 * (D - 1 - j), False)
    A(f"s_branch {name}_exit")
    A.label(f"{name}_g_cons")
    G.setup_reads()
    vAcc = (G.vend + 3) // 4 * 4
    def acc(nb, mb): return vAcc + 16 * nb
    for i in range(32):
        A(f"v_mov_b32 v{vAcc+i}, 0")
    vE = vAcc + 32
    srd(A, 8, 46, 47, WS_Z1, Z1_SIZE)
    srd(A, 12, 42, 43, 0, 4096)
    srd(A, 16, 46, 47, WS_U, U_SIZE)
    A("v_and_b32 v2, 31, v1")
    A("v_lshrrev_b32 v3, 5, v1")
    A("s_lshl_b32 s33, s22, 5")
    A("s_add_u32 s33, s33, s27")
    A("v_add_u32 v2, s33, v2")
    A("v_lshlrev_b32 v4, 1, v2")
    A(f"buffer_load_ushort v{vE}, v4, s[12:15], 0 offen")
    A("s_lshl_b32 s31, s29, 7")
    A("s_add_u32 s31, s31, s28")
    A(f"s_movk_i32 s32, {Z1_PITCH}")
    A("v_mul_lo_u32 v5, v2, s32")
    A("v_lshl_add_u32 v5, v3, 4, v5")
    A("v_add_u32 v5, s31, v5")
    A(f"s_movk_i32 s32, {U_PITCH}")
    A("v_mul_lo_u32 v6, v2, s32")
    A("v_lshl_add_u32 v6, v3, 4, v6")
    A("v_add_u32 v6, s31, v6")
    for nb in range(2):
        for s_ in range(2):
            A(f"buffer_load_dwordx4 {vr(vE+4+8*nb+4*s_,4)}, v5, s[8:11], 0 offen offset:{nb*64+s_*32}")
    A("s_barrier")
    ts_mark(A, 1, name, kidx + 1)
    A(f"s_mov_b32 s{G.send}, {NS}")
    A.lines.append(".p2align 6")
    A.label(f"{name}_g_cl")
    A("s_barrier")
    if cprio: A(f"s_setprio {cprio}")
    G.cur_addrs()
    G.compute_step(acc)
    if cprio: A("s_setprio 0")
    G.rotate()
    A(f"s_sub_u32 s{G.send}, s{G.send}, 1")
    A(f"s_cmp_lg_u32 s{G.send}, 0")
    A(f"s_cbranch_scc1 {name}_g_cl")
    ts_mark(A, 2, name, kidx + 1)
    if eprio: A(f"s_setprio {eprio}")
    A("s_waitcnt vmcnt(0)")
    A(f"v_lshlrev_b32 v{vE}, 16, v{vE}")
    A("s_nop 7")
    for nb in range(2):
        for s_ in range(2):
            a = acc(nb, 0) + 8 * s_
            z = vE + 4 + 8 * nb + 4 * s_
            t = vE + 20
            for i in range(4):
                A(f"v_lshlrev_b32 v{t+2*i}, 16, v{z+i}")
                A(f"v_and_b32 v{t+2*i+1}, 0xffff0000, v{z+i}")
            for i in range(8):
                A(f"v_add_f32 v{a+i}, v{a+i}, v{vE}")
                A(f"v_mul_f32 v{a+i}, v{a+i}, v{t+i}")
            if nb == 1:
                lab = A.newlabel(f"{name}_nz")
                A("s_cmp_eq_u32 s24, 6")
                A("s_cselect_b32 s33, s29, 0")
                A("s_cmp_eq_u32 s33, 0")
                A(f"s_cbranch_scc1 {lab}")
                for i in range(8):
                    A(f"v_mov_b32 v{a+i}, 0")
                A.label(lab)
            for i in range(4):
                A(f"v_cvt_pk_bf16_f32 v{z+i}, v{a+2*i}, v{a+2*i+1}")
            A(f"buffer_store_dwordx4 {vr(z,4)}, v6, s[16:19], 0 offen offset:{nb*64+s_*32}")
    if asmlib.INSTR:
        A("s_waitcnt vmcnt(0)")
    ts_mark(A, 3, name, kidx + 1)
    A(f"s_branch {name}_exit")

def gen_fused(A, name="k2_kernel", lnprio=2, lprio=1, cprio=1, eprio=1, noa=False, psleep=8, **kw):
    kernel_begin(A, name)
    A("s_cmp_ge_u32 s2, 512")
    A(f"s_cbranch_scc1 {name}_exit")
    A("s_cmp_ge_u32 s2, 256")
    A(f"s_cbranch_scc1 {name}_grole")
    if noa: A("s_endpgm")
    k2a.gen_attn(A, name, **kw)
    A.label(f"{name}_grole")
    g_role(A, name, 1, lnprio, lprio, cprio, eprio, 3, psleep)
    A.label(f"{name}_exit")
    A("s_endpgm")
    return 128, 102
```

```python
from asmlib import *
import asmlib
from k1 import *
from k1b import WS_Z2, Z2_PITCH, Z2_SIZE
from gemm import Gemm
from k2g import gate_rows
from k2h import ln_row_tiled
import k2a

AB5 = 8192; SLOT5 = 20480; NSL5 = 4
def rot5(A, sSlot):
    A(f"s_mov_b32 s70, s{sSlot}")
    for i in range(NSL5 - 1):
        A(f"s_mov_b32 s{sSlot+i}, s{sSlot+i+1}")
    A(f"s_mov_b32 s{sSlot+NSL5-1}, s70")

def poll_flag(A, name, tag, off_expr_s, target, psleep):
    A("s_cmp_lg_u32 s20, 4")
    A(f"s_cbranch_scc1 {name}_{tag}_np")
    A(f"v_mov_b32 v2, s{off_expr_s}")
    A("s_mov_b32 s32, 0x8000")
    A.label(f"{name}_{tag}_p")
    A("buffer_load_dword v3, v2, s[12:15], 0 offen sc1")
    A("s_waitcnt vmcnt(0)")
    A("v_readfirstlane_b32 s33, v3")
    A("s_nop 3")
    A(f"s_cmp_ge_u32 s33, {target}")
    A(f"s_cbranch_scc1 {name}_{tag}_np")
    A("s_sub_u32 s32, s32, 1")
    A("s_cmp_eq_u32 s32, 0")
    A(f"s_cbranch_scc1 {name}_{tag}_np")
    A(f"s_sleep {psleep}")
    A(f"s_branch {name}_{tag}_p")
    A.label(f"{name}_{tag}_np")

def loader_tail(A, name, lprio, psleep):
    sSlot = 62
    D = NSL5 - 1
    NB_, NA = 14, 12
    vAU, vAO, vBU, vBO = 10, 12, 18, 24
    srd(A, 4, 46, 47, WS_U, U_SIZE)
    srd(A, 8, 46, 47, WS_WT, WT_SIZE)
    srd(A, 16, 46, 47, WS_O, OREC_SIZE)
    srd(A, 12, 46, 47, WS_FLAG, FLAG_SIZE)
    A("s_mul_i32 s28, s24, 192")
    A("s_mul_i32 s29, s23, 114688")
    A("s_lshl_b32 s30, s21, 11")
    A("s_add_u32 s29, s29, s30")
    A("v_lshlrev_b32 v2, 4, v1")
    A(f"v_add_u32 v{vAU}, s29, v2")
    A("v_lshrrev_b32 v2, 3, v1")
    A("v_and_b32 v3, 7, v1")
    for j in range(2):
        A("s_lshl_b32 s29, s21, 4")
        A(f"s_add_u32 s29, s29, {8*j}")
        A("v_add_u32 v4, s29, v2")
        A("v_bfe_u32 v5, v4, 1, 3")
        A("v_xor_b32 v5, v5, v3")
        A("v_lshrrev_b32 v6, 5, v4")
        A("s_lshl_b32 s29, s23, 1")
        A("v_add_u32 v6, s29, v6")
        A("s_movk_i32 s29, 1536")
        A("v_mul_lo_u32 v6, v6, s29")
        A("v_and_b32 v7, 31, v4")
        A("v_mul_u32_u24 v7, 48, v7")
        A("v_add_u32 v6, v6, v7")
        for r in range(3):
            A(f"v_add_u32 v7, {8*r}, v5")
            A("v_mul_u32_u24 v8, 21846, v7")
            A("v_lshrrev_b32 v8, 16, v8")
            A("v_mul_u32_u24 v9, 3, v8")
            A("v_sub_u32 v9, v7, v9")
            A("s_mov_b32 s29, 98304")
            A("v_mul_lo_u32 v8, v8, s29")
            A("v_lshl_add_u32 v8, v9, 4, v8")
            A("v_add_u32 v8, v8, v6")
            A(f"v_mov_b32 v{vAO+2*r+j}, v8")
    A(f"s_mul_i32 s29, s24, {26*12288}")
    A("s_mul_i32 s30, s21, 3072")
    A("s_add_u32 s29, s29, s30")
    A("v_lshlrev_b32 v2, 4, v1")
    A(f"v_add_u32 v{vBU}, s29, v2")
    A("s_lshl_b32 s31, s21, 11")
    A("s_mul_i32 s30, s21, 3072")
    A(f"s_add_u32 s30, s30, {AB5}")
    for i in range(NSL5):
        A(f"s_mov_b32 s{sSlot+i}, {i*SLOT5}")
    order = []
    def issA(slot, gst):
        p4 = gst >= NB_
        A(f"s_add_u32 m0, s{sSlot+slot}, s31")
        if not p4:
            A(f"s_mov_b32 s29, {gst*8192}")
            for j in range(2):
                A(f"buffer_load_dwordx4 v{vAU}, s[4:7], s29 offen offset:{j*1024} sc1 lds")
        else:
            k = gst - NB_; m, r = k // 3, k % 3
            A(f"s_mov_b32 s29, {m*8*98304}")
            A(f"buffer_load_dwordx4 v{vAO+2*r}, s[16:19], s29 offen sc1 lds")
            A("s_add_u32 m0, m0, 1024")
            A("s_nop 0")
            A(f"buffer_load_dwordx4 v{vAO+2*r+1}, s[16:19], s29 offen sc1 lds")
        order.append(("A", gst, 2))
    def issB(slot, gst):
        A(f"s_add_u32 m0, s{sSlot+slot}, s30")
        A(f"s_mov_b32 s29, {gst*12288}")
        for j in range(3):
            A(f"buffer_load_dwordx4 v{vBU}, s[8:11], s29 offen offset:{j*1024} lds")
        order.append(("B", gst, 3))
    def bar():
        if lprio: A("s_setprio 0")
        A("s_barrier")
        if lprio: A(f"s_setprio {lprio}")
    def waitfor(gst):
        last = max(k for k, o in enumerate(order) if o[1] == gst)
        younger = sum(o[2] for o in order[last+1:])
        A(f"s_waitcnt vmcnt({younger})")
    bar()
    for i in range(D): issB(i, i)
    A("s_lshl_b32 s29, s23, 7")
    A("s_add_u32 s36, s29, 4096")
    poll_flag(A, name, "pu", 36, 7, psleep)
    bar()
    for i in range(D): issA(i, i)
    for s_ in range(NB_):
        waitfor(s_)
        bar()
        g = s_ + D
        if g < NB_:
            issA(D, g); issB(D, g)
        else:
            issB(D, g)
        rot5(A, sSlot)
    A("s_lshl_b32 s29, s23, 7")
    A("s_add_u32 s36, s29, 8192")
    poll_flag(A, name, "po", 36, 64, psleep)
    bar()
    for i in range(D): issA(i, NB_ + i)
    for s_ in range(NA):
        waitfor(NB_ + s_)
        bar()
        g = NB_ + s_ + D
        if g < NB_ + NA:
            issA(D, g); issB(D, g)
        rot5(A, sSlot)

def consumer_tail(A, name, kidx, cprio2):
    sSlot = 62
    A("s_waitcnt vmcnt(0)")
    A("s_setprio 0")
    A("s_barrier")
    srd(A, 12, 46, 47, WS_FLAG, FLAG_SIZE)
    A("s_cmp_lg_u32 s20, 0")
    A(f"s_cbranch_scc1 {name}_t_nf")
    A("s_lshl_b32 s30, s23, 7")
    A("s_add_u32 s30, s30, 4096")
    A("v_mov_b32 v2, s30")
    A("v_mov_b32 v3, 1")
    A("s_mov_b64 exec, 1")
    A("buffer_atomic_add v3, v2, s[12:15], 0 offen sc1")
    A("s_mov_b64 exec, -1")
    A.label(f"{name}_t_nf")
    ts_mark(A, 3, name, kidx + 1)
    vXb, vWb, vXc, vWc, vF, vAcc = 10, 14, 16, 20, 24, 60
    mode = [2]
    def Xf(kk): return vF + (12 * (kk % 3) if mode[0] == 2 else 8 * kk)
    def Wf(kk, i): return Xf(kk) + 4 + 4 * i
    A("v_and_b32 v2, 31, v1")
    A("s_lshl_b32 s30, s22, 5")
    A("v_add_u32 v2, s30, v2")
    A("v_lshlrev_b32 v2, 7, v2")
    A("v_lshrrev_b32 v3, 5, v1")
    A("v_bfe_u32 v4, v1, 1, 3")
    for kk in range(4):
        A(f"v_or_b32 v5, {2*kk}, v3")
        A("v_xor_b32 v5, v5, v4")
        A(f"v_lshl_add_u32 v{vXb+kk}, v5, 4, v2")
    A("v_lshrrev_b32 v2, 5, v1")
    A("v_bfe_u32 v3, v1, 2, 2")
    A("v_lshl_add_u32 v4, v2, 3, v3")
    A("v_mul_u32_u24 v4, 192, v4")
    A("v_bfe_u32 v5, v1, 4, 1")
    A("v_lshl_add_u32 v4, v5, 5, v4")
    A("v_and_b32 v5, 1, v1")
    A("v_lshl_add_u32 v4, v5, 4, v4")
    A("v_bfe_u32 v5, v1, 1, 1")
    A("v_lshl_add_u32 v4, v5, 3, v4")
    A("s_lshl_b32 s30, s29, 7")
    A(f"s_add_u32 s30, s30, {AB5}")
    A(f"v_add_u32 v{vWb}, s30, v4")
    A(f"v_add_u32 v{vWb+1}, 64, v{vWb}")
    for i in range(64):
        A(f"v_mov_b32 v{vAcc+i}, 0")
    def accB(i): return vAcc + 16 * i
    def accA(i): return vAcc + 32 + 16 * i
    for i in range(NSL5):
        A(f"s_mov_b32 s{sSlot+i}, {i*SLOT5}")
    vG = vAcc + 64 - 64 + 0
    vG = 6
    srd(A, 8, 46, 47, WS_GATE, GATE_SIZE)
    srd(A, 16, 78, 79, 0, 2048 * 1280)
    A("v_and_b32 v2, 31, v1")
    A("s_lshl_b32 s30, s22, 5")
    A("s_add_u32 s30, s30, s27")
    A("v_add_u32 v2, s30, v2")
    A("v_lshlrev_b32 v4, 2, v2")
    A(f"buffer_load_dword v{vG}, v4, s[8:11], 0 offen")
    A("s_barrier")
    ts_mark(A, 0, name, kidx + 2)
    def cstep(acc, tn):
        mode[0] = tn
        A("s_barrier")
        if cprio2: A(f"s_setprio {cprio2}")
        for kk in range(4):
            A(f"v_add_u32 v{vXc+kk}, s{sSlot}, v{vXb+kk}")
        for i in range(tn):
            A(f"v_add_u32 v{vWc+i}, s{sSlot}, v{vWb+i}")
        nr = 1 + 2 * tn
        def rd(kk):
            A(f"ds_read_b128 {vr(Xf(kk),4)}, v{vXc+kk}")
            for i in range(tn):
                A(f"ds_read_b64_tr_b16 {vr(Wf(kk,i),2)}, v{vWc+i} offset:{kk*3072}")
                A(f"ds_read_b64_tr_b16 {vr(Wf(kk,i)+2,2)}, v{vWc+i} offset:{kk*3072+768}")
        def mf(kk):
            for i in range(tn):
                A(f"v_mfma_f32_32x32x16_bf16 {vr(acc(i),16)}, {vr(Wf(kk,i),4)}, {vr(Xf(kk),4)}, {vr(acc(i),16)}")
        rd(0); rd(1)
        if tn == 1:
            rd(2); rd(3)
            for kk in range(4):
                A(f"s_waitcnt lgkmcnt({nr*(3-kk)})"); mf(kk)
        else:
            rd(2)
            A(f"s_waitcnt lgkmcnt({2*nr})"); mf(0); rd(3)
            A(f"s_waitcnt lgkmcnt({2*nr})"); mf(1)
            A(f"s_waitcnt lgkmcnt({nr})"); mf(2)
            A("s_waitcnt lgkmcnt(0)"); mf(3)
        if cprio2: A("s_setprio 0")
        rot5(A, sSlot)
    A("s_cmp_eq_u32 s29, 0")
    A(f"s_cbranch_scc0 {name}_t1")
    for tn in (2, 1):
        if tn == 1: A.label(f"{name}_t1")
        for (tag, n, acc) in (("b", 14, accB), ("a", 12, accA)):
            if tag == "a":
                ts_mark(A, 1, name, kidx + 2)
                A("s_barrier")
                ts_mark(A, 2, name, kidx + 2)
            A(f"s_mov_b32 s35, {n}")
            A.label(f"{name}_t{tn}{tag}")
            cstep(acc, tn)
            A("s_sub_u32 s35, s35, 1")
            A("s_cmp_lg_u32 s35, 0")
            A(f"s_cbranch_scc1 {name}_t{tn}{tag}")
        if tn == 2: A(f"s_branch {name}_tepi")
    A.label(f"{name}_tepi")
    A("v_lshrrev_b32 v3, 5, v1")
    A("s_mul_i32 s28, s24, 192")
    A("s_lshl_b32 s31, s29, 7")
    A("s_add_u32 s31, s31, s28")
    A("s_movk_i32 s32, 1280")
    A("v_mul_lo_u32 v7, v2, s32")
    A("v_lshl_add_u32 v7, v3, 4, v7")
    A("v_add_u32 v7, s31, v7")
    A("s_waitcnt vmcnt(0)")
    A(f"v_sub_f32 v{vG+2}, 1.0, v{vG}")
    A("s_nop 15")
    for i in range(2):
        lab = A.newlabel(f"{name}_oskip")
        A("s_lshl_b32 s33, s29, 1")
        A(f"s_add_u32 s33, s33, {i}")
        A("s_cmp_ge_u32 s33, 3")
        A(f"s_cbranch_scc1 {lab}")
        A("s_cmp_eq_u32 s24, 6")
        A("s_cselect_b32 s36, s33, 0")
        A("s_cmp_eq_u32 s36, 2")
        A(f"s_cbranch_scc1 {lab}")
        for s_ in range(2):
            a = accA(i) + 8 * s_; b = accB(i) + 8 * s_
            for k in range(8):
                A(f"v_mul_f32 v{a+k}, v{a+k}, v{vG}")
                A(f"v_fmac_f32 v{a+k}, v{b+k}, v{vG+2}")
            d = vF + 4 * (2 * i + s_)
            for k in range(4):
                A(f"v_cvt_pk_bf16_f32 v{d+k}, v{a+2*k}, v{a+2*k+1}")
            A(f"buffer_store_dwordx4 {vr(d,4)}, v7, s[16:19], 0 offen offset:{i*64+s_*32}")
        A.label(lab)
    if asmlib.INSTR:
        A("s_waitcnt vmcnt(0)")
    ts_mark(A, 3, name, kidx + 2)

def g_role(A, name, kidx, lnprio=2, lprio=1, cprio=0, eprio=1, psleep=8, cprio2=1, deep=True, wpf=False, asplit=True, egelu=False, jit=0, lna=False, zpf=False, lazy=True):
    NZ, NS = 10, 32
    D = 2
    A("s_sub_u32 s2, s2, 256")
    ts_begin(A)
    A("s_load_dwordx2 s[36:37], s[0:1], 0")
    A("s_load_dwordx4 s[40:43], s[0:1], 32")
    A("s_load_dwordx2 s[38:39], s[0:1], 48")
    A("s_load_dwordx2 s[46:47], s[0:1], 88")
    A("s_load_dwordx2 s[34:35], s[0:1], 16")
    A("s_load_dwordx2 s[76:77], s[0:1], 56")
    A("s_load_dwordx2 s[78:79], s[0:1], 72")
    if lnprio: A(f"s_setprio {lnprio}")
    A("v_and_b32 v1, 63, v0")
    A("v_lshrrev_b32 v2, 6, v0")
    A("s_and_b32 s48, s2, 7")
    A("v_readfirstlane_b32 s20, v2")
    A("s_lshr_b32 s49, s2, 3")
    A("s_lshl_b32 s23, s48, 2")
    A("s_and_b32 s50, s49, 3")
    A("s_add_u32 s23, s23, s50")
    A("s_lshr_b32 s24, s49, 2")
    A("s_and_b32 s21, s20, 3")
    A("s_lshl_b32 s27, s23, 6")
    A("s_lshl_b32 s28, s24, 8")
    G = Gemm(A, 4, 64, 2, 2, 1, 2, 3, 0, 40, 60, 21, 22, 29, 1)
    G.init_slots()
    sOA, sOB = G.sOffA, G.sOffB
    vA1, vA2, vB1, vB2 = 40, 42, 44, 48
    A("s_waitcnt lgkmcnt(0)")
    srd(A, 12, 46, 47, WS_FLAG, FLAG_SIZE)
    srd(A, 4, 36, 37, 0, 2048 * 1280)
    srd(A, 72, 40, 41, 0, 640 * 3456)
    A("s_cmp_eq_u32 s24, 7")
    A("s_cselect_b32 s25, 0, 1")
    A("s_cmp_ge_u32 s20, 4")
    A("s_cselect_b32 s26, s25, 0")
    G.setup_dma_a(vA1, 27, 1280)
    G.setup_dma_a(vA2, 27, 4096)
    G.setup_dma_b(vB1, 28, 3456)
    A("s_lshl_b32 s30, s24, 19")
    A("s_lshl_b32 s31, s21, 12")
    A("s_add_u32 s30, s30, s31")
    A("v_lshlrev_b32 v2, 4, v1")
    A(f"v_add_u32 v{vB2}, s30, v2")
    def iss1(slot):
        if not asplit:
            G.issue_a(slot, 4, vA1, sOA)
            A(f"s_add_u32 s{sOA}, s{sOA}, 128")
        G.issue_b(slot, 72, vB1, sOB)
        A(f"s_add_u32 s{sOB}, s{sOB}, {64*3456}")
    A(f"s_mov_b32 s{sOA}, 0")
    A(f"s_mov_b32 s{sOB}, 0")
    A("s_cmp_eq_u32 s26, 0")
    A(f"s_cbranch_scc1 {name}_g_pre")
    for i in range(D): iss1(i)
    A.label(f"{name}_g_pre")
    if asplit:
        A("s_cmp_lt_u32 s20, 4")
        A("s_cselect_b32 s26, s25, 0")
        A("s_cmp_eq_u32 s26, 0")
        A(f"s_cbranch_scc1 {name}_g_pre2")
        for i in range(D):
            G.issue_a(i, 4, vA1, sOA)
            A(f"s_add_u32 s{sOA}, s{sOA}, 128")
        A.label(f"{name}_g_pre2")
    if not lna:
        srd(A, 8, 46, 47, WS_Z2, Z2_SIZE)
        srd(A, 16, 46, 47, WS_Z2N, Z2N_SIZE)
        A("s_lshl_b32 s22, s2, 3")
        A("s_add_u32 s22, s22, s20")
        def zprefetch():
            A("s_mul_i32 s30, s20, 80")
            A("v_add_u32 v36, s30, v1")
            A("s_movk_i32 s31, 3456")
            A("v_mul_lo_u32 v36, v36, s31")
            A("s_min_u32 s31, s24, 6")
            A("s_lshl_b32 s31, s31, 8")
            A("v_add_u32 v36, s31, v36")
            A("buffer_load_dword v52, v36, s[72:75], 0 offen")
            A("buffer_load_dword v53, v36, s[72:75], 0 offen offset:128")
            A(f"s_mov_b32 s31, {64*3456}")
            A("s_mov_b64 s[30:31], exec") if False else None
            A("v_cmp_gt_u32 vcc, 16, v1")
            A("s_and_saveexec_b64 s[58:59], vcc")
            A("buffer_load_dword v54, v36, s[72:75], s31 offen")
            A("buffer_load_dword v55, v36, s[72:75], s31 offen offset:128")
            A("s_mov_b64 exec, s[58:59]")
        if zpf:
            ln_row_tiled(A, 22, 8, 16, 1, 2, 52, Z2_PITCH, 0, wait0=4, mid=zprefetch)
        else:
            ln_row_tiled(A, 22, 8, 16, 1, 2, 52, Z2_PITCH, 0)
        def sig_ln():
            A("s_lshr_b32 s30, s2, 3")
            A("s_lshl_b32 s30, s30, 7")
            A("v_mov_b32 v2, s30")
            A("v_mov_b32 v3, 1")
            A("s_mov_b64 exec, 1")
            A("buffer_atomic_add v3, v2, s[70:73], 0 offen sc1") if False else A("buffer_atomic_add v3, v2, s[80:83], 0 offen sc1")
            A("s_mov_b64 exec, -1")
        if lazy:
            srd(A, 80, 46, 47, WS_FLAG, FLAG_SIZE)
            A("s_setprio 0")
            A("s_cmp_lg_u32 s24, 7")
            A(f"s_cbranch_scc1 {name}_g_lz")
            A("s_waitcnt vmcnt(0)")
            sig_ln()
            A.label(f"{name}_g_lz")
        else:
            A("s_waitcnt vmcnt(0)")
            A("s_setprio 0")
            A("s_barrier")
            A("s_cmp_lg_u32 s20, 0")
            A(f"s_cbranch_scc1 {name}_g_noflag")
            A("s_lshr_b32 s30, s2, 3")
            A("s_lshl_b32 s30, s30, 7")
            A("v_mov_b32 v2, s30")
            A("v_mov_b32 v3, 1")
            A("s_mov_b64 exec, 1")
            A("buffer_atomic_add v3, v2, s[12:15], 0 offen sc1")
            A("s_mov_b64 exec, -1")
            A.label(f"{name}_g_noflag")
    else:
        A("s_waitcnt vmcnt(0)")
        A("s_setprio 0")
        A("s_barrier")
    ts_mark(A, 0, name, kidx + 1)
    A("s_cmp_lg_u32 s24, 7")
    A(f"s_cbranch_scc1 {name}_g_gemm")
    if wpf:
        srd(A, 8, 42, 43, 0, 2048 * 4096)
        A("s_lshl_b32 s33, s23, 6")
        A("s_lshl_b32 s32, s20, 3")
        A("s_add_u32 s33, s33, s32")
        A("s_lshl_b32 s33, s33, 12")
        A("v_lshlrev_b32 v2, 4, v1")
        A("v_add_u32 v2, s33, v2")
        for c in range(4):
            for r in range(8):
                A(f"s_mov_b32 s33, {r*4096 + c*1024}")
                A(f"buffer_load_dwordx4 v[{40+4*(r%4)}:{43+4*(r%4)}], v2, s[8:11], s33 offen")
    A(f"s_branch {name}_exit")
    A.label(f"{name}_g_gemm")
    A("s_lshr_b32 s22, s21, 1")
    A("s_and_b32 s29, s21, 1")
    A("s_cmp_ge_u32 s20, 4")
    A(f"s_cbranch_scc0 {name}_g_cons")
    srd(A, 8, 42, 43, 0, 2048 * 4096)
    srd(A, 16, 46, 47, WS_Z2N, Z2N_SIZE)
    if lprio: A(f"s_setprio {lprio}")
    def iss2(slot):
        if not asplit: G.issue_a(slot, 8, vA2, sOA)
        A(f"s_add_u32 m0, s{G.sSlot+slot}, s{G.sM0B}")
        A(f"s_add_u32 s{sOA}, s{sOA}, 128")
        for j in range(4):
            A(f"buffer_load_dwordx4 v{vB2}, s[16:19], s{sOB} offen offset:{j*1024} sc1 lds")
        A(f"s_add_u32 s{sOB}, s{sOB}, 16384")
    def lstep(wait, issue_fn, pre=None):
        A(f"s_waitcnt vmcnt({wait})")
        if pre: pre()
        if lprio: A("s_setprio 0")
        A("s_barrier")
        if lprio: A(f"s_setprio {lprio}")
        if issue_fn: issue_fn(D)
        G.rotate()
    def poll():
        A("s_cmp_lg_u32 s20, 4")
        A(f"s_cbranch_scc1 {name}_g_nopoll")
        A("v_and_b32 v2, 31, v1")
        A("v_lshlrev_b32 v2, 7, v2")
        A("s_movk_i32 s32, 0x4000")
        A.label(f"{name}_g_poll")
        A("buffer_load_dword v3, v2, s[12:15], 0 offen sc1")
        A("s_waitcnt vmcnt(0)")
        A(f"v_cmp_le_u32 vcc, {64 if (lna or lazy) else 8}, v3")
        A("s_nop 3")
        A("s_cmp_eq_u64 vcc, -1")
        A(f"s_cbranch_scc1 {name}_g_polled")
        A("s_sub_u32 s32, s32, 1")
        A("s_cmp_eq_u32 s32, 0")
        A(f"s_cbranch_scc1 {name}_g_polled")
        A(f"s_sleep {psleep}")
        A(f"s_branch {name}_g_poll")
        A.label(f"{name}_g_polled")
        A.label(f"{name}_g_nopoll")
    NL = 4 if asplit else 6
    if lazy:
        lstep(2, iss1)
        lstep(NL, iss1, pre=sig_ln)
        A(f"s_mov_b32 s{G.send}, {NZ-4}")
    else:
        lstep(0, iss1)
        A(f"s_mov_b32 s{G.send}, {NZ-3}")
    A.label(f"{name}_g_l1")
    lstep(NL, iss1)
    A(f"s_sub_u32 s{G.send}, s{G.send}, 1")
    A(f"s_cmp_lg_u32 s{G.send}, 0")
    A(f"s_cbranch_scc1 {name}_g_l1")
    A(f"s_mov_b32 s{sOA}, 0")
    A(f"s_mov_b32 s{sOB}, 0")
    lstep(NL, iss2, pre=poll)
    lstep(NL, iss2)
    A(f"s_mov_b32 s{G.send}, {NS-2}")
    A.label(f"{name}_g_l2")
    lstep(NL, iss2)
    A(f"s_sub_u32 s{G.send}, s{G.send}, 1")
    A(f"s_cmp_lg_u32 s{G.send}, 0")
    A(f"s_cbranch_scc1 {name}_g_l2")
    lstep(NL, None)
    lstep(0, None)
    loader_tail(A, name, lprio, psleep)
    A(f"s_branch {name}_exit")
    A.label(f"{name}_g_cons")
    G2 = Gemm(A, 4, 64, 2, 2, 1, 2, 3, 0, 10, 60, 21, 22, 29, 1)
    if asplit:
        for i in range(4): A(f"v_mov_b32 v{10+i}, v{40+i}")
        srd(A, 8, 42, 43, 0, 2048 * 4096)
    G2.setup_reads()
    vAcc = (G2.vend + 3) // 4 * 4
    def acc1(nb, mb): return vAcc + 16 * nb
    def acc2(nb, mb): return vAcc + 32 + 16 * nb
    for i in range(64):
        A(f"v_mov_b32 v{vAcc+i}, 0")
    vE = 9
    srd(A, 12, 38, 39, 0, 4096)
    srd(A, 16, 46, 47, WS_U, U_SIZE)
    A("v_and_b32 v2, 31, v1")
    A("v_lshrrev_b32 v3, 5, v1")
    A("s_lshl_b32 s33, s22, 5")
    A("s_add_u32 s33, s33, s27")
    A("v_add_u32 v2, s33, v2")
    A("v_lshlrev_b32 v4, 1, v2")
    A(f"buffer_load_ushort v{vE}, v4, s[12:15], 0 offen")
    FB = [G2.vF, G2.vF + 12, 116]
    def rd3(kk, b):
        f = FB[b]
        A(f"ds_read_b128 {vr(f,4)}, v{G2.vXc+kk}")
        for nb in range(2):
            A(f"ds_read_b64_tr_b16 {vr(f+4+4*nb,2)}, v{G2.vWc+nb} offset:{kk*4096}")
            A(f"ds_read_b64_tr_b16 {vr(f+4+4*nb+2,2)}, v{G2.vWc+nb} offset:{kk*4096+1024}")
    def mf3(b, acc):
        f = FB[b]
        for nb in range(2):
            A(f"v_mfma_f32_32x32x16_bf16 {vr(acc(nb,0),16)}, {vr(f+4+4*nb,4)}, {vr(f,4)}, {vr(acc(nb,0),16)}")
    def cstep(acc, iss=None, wait=None):
        if wait is not None: A(f"s_waitcnt vmcnt({wait})")
        A("s_barrier")
        if cprio: A(f"s_setprio {cprio}")
        G2.cur_addrs()
        if jit:
            f0, f1 = FB[0], FB[1]
            def rX(kk): A(f"ds_read_b128 {vr(FB[kk%2],4)}, v{G2.vXc+kk}")
            def rW(kk, nb):
                f = FB[kk % 2]
                A(f"ds_read_b64_tr_b16 {vr(f+4+4*nb,2)}, v{G2.vWc+nb} offset:{kk*4096}")
                A(f"ds_read_b64_tr_b16 {vr(f+4+4*nb+2,2)}, v{G2.vWc+nb} offset:{kk*4096+1024}")
            def mm(kk, nb):
                f = FB[kk % 2]
                A(f"v_mfma_f32_32x32x16_bf16 {vr(acc(nb,0),16)}, {vr(f+4+4*nb,4)}, {vr(f,4)}, {vr(acc(nb,0),16)}")
            seq = [(kk, nb) for kk in range(4) for nb in range(2)]
            def reads_for(i):
                kk, nb = seq[i]
                if nb == 0: rX(kk)
                rW(kk, nb)
                return 3 if nb == 0 else 2
            if jit == 1:
                for i in range(8):
                    reads_for(i)
                    if i == 1 and iss == 1:
                        G2.issue_a(2, 4, 10, G2.sOffA); A(f"s_add_u32 s{G2.sOffA}, s{G2.sOffA}, 128")
                    elif i == 1 and iss == 2:
                        G2.issue_a(2, 8, 12, G2.sOffA); A(f"s_add_u32 s{G2.sOffA}, s{G2.sOffA}, 128")
                    A("s_waitcnt lgkmcnt(0)")
                    mm(*seq[i])
            else:
                reads_for(0)
                for i in range(8):
                    n1 = reads_for(i + 1) if i + 1 < 8 else 0
                    if i == 2 and iss == 1:
                        G2.issue_a(2, 4, 10, G2.sOffA); A(f"s_add_u32 s{G2.sOffA}, s{G2.sOffA}, 128")
                    elif i == 2 and iss == 2:
                        G2.issue_a(2, 8, 12, G2.sOffA); A(f"s_add_u32 s{G2.sOffA}, s{G2.sOffA}, 128")
                    A(f"s_waitcnt lgkmcnt({n1})")
                    mm(*seq[i])
        elif deep:
            rd3(0, 0); rd3(1, 1); rd3(2, 2)
            if iss == 1:
                G2.issue_a(2, 4, 10, G2.sOffA); A(f"s_add_u32 s{G2.sOffA}, s{G2.sOffA}, 128")
            elif iss == 2:
                G2.issue_a(2, 8, 12, G2.sOffA); A(f"s_add_u32 s{G2.sOffA}, s{G2.sOffA}, 128")
            A("s_waitcnt lgkmcnt(10)"); mf3(0, acc); rd3(3, 0)
            A("s_waitcnt lgkmcnt(10)"); mf3(1, acc)
            A("s_waitcnt lgkmcnt(5)"); mf3(2, acc)
            A("s_waitcnt lgkmcnt(0)"); mf3(0, acc)
        else:
            G2.compute_step(acc)
        if cprio: A("s_setprio 0")
        G2.rotate()
    if not asplit:
        for (lab, n, acc) in ((f"{name}_g_c1", NZ, acc1), (f"{name}_g_c2", NS, acc2)):
            A(f"s_mov_b32 s{G2.send}, {n}")
            A.lines.append(".p2align 6")
            A.label(lab)
            cstep(acc)
            A(f"s_sub_u32 s{G2.send}, s{G2.send}, 1")
            A(f"s_cmp_lg_u32 s{G2.send}, 0")
            A(f"s_cbranch_scc1 {lab}")
            ts_mark(A, 1 if n == NZ else 2, name, kidx + 1)
    else:
        def loop(lab, n, acc, iss):
            A(f"s_mov_b32 s{G2.send}, {n}")
            A.lines.append(".p2align 6")
            A.label(lab)
            cstep(acc, iss, 2)
            A(f"s_sub_u32 s{G2.send}, s{G2.send}, 1")
            A(f"s_cmp_lg_u32 s{G2.send}, 0")
            A(f"s_cbranch_scc1 {lab}")
        A(f"s_mov_b32 s{G2.sOffA}, 256")
        if lazy:
            cstep(acc1, 1, None)
            A("s_waitcnt vmcnt(2)")
            sig_ln()
            cstep(acc1, 1, None)
            loop(f"{name}_g_c1a", 6, acc1, 1)
        else:
            loop(f"{name}_g_c1a", 8, acc1, 1)
        A(f"s_mov_b32 s{G2.sOffA}, 0")
        loop(f"{name}_g_c1b", 2, acc1, 2)
        if egelu:
            A("s_nop 15")
            A(f"v_mov_b32 v2, {fhex(GC1)}"); A(f"v_mov_b32 v3, {fhex(GC1)}")
            A(f"v_mov_b32 v4, {fhex(GC0)}"); A(f"v_mov_b32 v5, {fhex(GC0)}")
            A("v_mov_b32 v6, 1.0"); A("v_mov_b32 v7, 1.0")
            for nb in range(2):
                gelu_pk(A, [acc1(nb, 0) + 2 * i for i in range(8)], G2.vF, (2, 4, 6))
        ts_mark(A, 1, name, kidx + 1)
        loop(f"{name}_g_c2a", 30, acc2, 2)
        cstep(acc2, None, 2)
        cstep(acc2, None, 0)
        ts_mark(A, 2, name, kidx + 1)
    if eprio: A(f"s_setprio {eprio}")
    A("s_lshl_b32 s31, s29, 7")
    A("s_add_u32 s31, s31, s28")
    A(f"s_movk_i32 s32, {U_PITCH}")
    A("v_mul_lo_u32 v6, v2, s32")
    A("v_lshl_add_u32 v6, v3, 4, v6")
    A("v_add_u32 v6, s31, v6")
    vC = 10
    A(f"v_mov_b32 v{vC}, {fhex(GC1)}")
    A(f"v_mov_b32 v{vC+1}, {fhex(GC1)}")
    A(f"v_mov_b32 v{vC+2}, {fhex(GC0)}")
    A(f"v_mov_b32 v{vC+3}, {fhex(GC0)}")
    A(f"v_mov_b32 v{vC+4}, 1.0")
    A(f"v_mov_b32 v{vC+5}, 1.0")
    A("s_waitcnt vmcnt(0)")
    A(f"v_lshlrev_b32 v{vE}, 16, v{vE}")
    A("s_nop 7")
    vT = G2.vF
    A(f"s_lshl_b32 s36, s21, 12")
    A(f"s_add_u32 s36, s36, s{G2.sSlot}")
    A("v_and_b32 v7, 31, v1")
    A("v_bfe_u32 v5, v1, 1, 3")
    A("v_lshrrev_b32 v8, 5, v1")
    A("v_xor_b32 v5, v5, v8")
    A("v_lshlrev_b32 v7, 7, v7")
    A("v_add_u32 v7, s36, v7")
    for nb in range(2):
        a1 = acc1(nb, 0); a2 = acc2(nb, 0)
        if not (egelu and asplit): gelu_pk(A, [a1 + 2 * i for i in range(8)], vT, (vC, vC + 2, vC + 4))
        for i in range(16):
            A(f"v_add_f32 v{a2+i}, v{a2+i}, v{vE}")
        for i in range(8):
            A(f"v_pk_mul_f32 {vr(a1+2*i,2)}, {vr(a1+2*i,2)}, {vr(a2+2*i,2)}")
        if nb == 1:
            lab = A.newlabel(f"{name}_nz")
            A("s_cmp_eq_u32 s24, 6")
            A("s_cselect_b32 s33, s29, 0")
            A("s_cmp_eq_u32 s33, 0")
            A(f"s_cbranch_scc1 {lab}")
            for i in range(16):
                A(f"v_mov_b32 v{a1+i}, 0")
            A.label(lab)
        for s_ in range(2):
            d = vT + 16 + 4 * s_
            for i in range(4):
                A(f"v_cvt_pk_bf16_f32 v{d+i}, v{a1+8*s_+2*i}, v{a1+8*s_+2*i+1}")
            A(f"v_xor_b32 v8, {4*nb+2*s_}, v5")
            A("v_lshl_add_u32 v8, v8, 4, v7")
            A(f"ds_write_b128 v8, {vr(d,4)}")
        A("s_nop 1")
    A("s_waitcnt lgkmcnt(0)")
    A("v_lshlrev_b32 v8, 4, v1")
    A("v_add_u32 v5, s36, v8")
    for j_ in range(4):
        A(f"ds_read_b128 {vr(vT+4*j_,4)}, v5 offset:{j_*1024}")
    A("s_mul_i32 s31, s23, 14")
    A("s_lshl_b32 s32, s24, 1")
    A("s_add_u32 s31, s31, s32")
    A("s_add_u32 s31, s31, s29")
    A("s_lshl_b32 s31, s31, 13")
    A("s_lshl_b32 s32, s22, 12")
    A("s_add_u32 s31, s31, s32")
    A("v_add_u32 v8, s31, v8")
    A("s_waitcnt lgkmcnt(0)")
    for j_ in range(4):
        A(f"buffer_store_dwordx4 {vr(vT+4*j_,4)}, v8, s[16:19], 0 offen offset:{j_*1024} sc1")
    consumer_tail(A, name, kidx, cprio2)
    A(f"s_branch {name}_exit")

def gen_fused(A, name="k2_kernel", lnprio=2, lprio=1, cprio=0, eprio=1, noa=False, psleep=8, cprio2=1, deep=True, wpf=False, asplit=True, egelu=False, jit=0, lna=False, zpf=False, lazy=True, **kw):
    kernel_begin(A, name)
    A("s_cmp_ge_u32 s2, 512")
    A(f"s_cbranch_scc1 {name}_exit")
    A("s_cmp_ge_u32 s2, 256")
    A(f"s_cbranch_scc1 {name}_grole")
    if noa: A("s_endpgm")
    k2a.gen_attn(A, name, sf='sc1', sigO=True, orec=True, doln=lna, **kw)
    A.label(f"{name}_grole")
    g_role(A, name, 1, lnprio, lprio, cprio, eprio, psleep, cprio2, deep, wpf, asplit, egelu, jit, lna, zpf, lazy)
    A.label(f"{name}_exit")
    A("s_endpgm")
    return 128, 102
```

```python
from asmlib import *
import asmlib
from k1 import *

def gen_final2(A, name="k5_kernel", kidx=4, store_flags="", nocomp=False, nodma=False, onlya=False, onlyb=False):
    kernel_begin(A, name)
    NSL = 7; D = NSL - 1
    AB = 8192; SLOT = 8192 + 12288
    NA, NB_ = 10, 14
    NT = NA + NB_
    A("s_cmp_ge_u32 s2, 224")
    A(f"s_cbranch_scc1 {name}_exit")
    ts_begin(A)
    A("s_load_dwordx2 s[40:41], s[0:1], 16")
    A("s_load_dwordx2 s[42:43], s[0:1], 56")
    A("s_load_dwordx2 s[44:45], s[0:1], 72")
    A("s_load_dwordx2 s[46:47], s[0:1], 88")
    A("v_and_b32 v1, 63, v0")
    A("v_lshrrev_b32 v2, 6, v0")
    A("s_and_b32 s48, s2, 7")
    A("v_readfirstlane_b32 s20, v2")
    A("s_lshr_b32 s49, s2, 3")
    A("s_lshl_b32 s23, s48, 2")
    A("s_and_b32 s50, s49, 3")
    A("s_add_u32 s23, s23, s50")
    A("s_lshr_b32 s24, s49, 2")
    A("s_lshl_b32 s27, s23, 6")
    A("s_mul_i32 s28, s24, 192")
    sSlot = 60
    for i in range(NSL):
        A(f"s_mov_b32 s{sSlot+i}, {i*SLOT}")
    def rotate():
        A(f"s_mov_b32 s70, s{sSlot}")
        for i in range(NSL - 1):
            A(f"s_mov_b32 s{sSlot+i}, s{sSlot+i+1}")
        A(f"s_mov_b32 s{sSlot+NSL-1}, s70")
    A("s_waitcnt lgkmcnt(0)")
    A("s_cmp_ge_u32 s20, 4")
    A(f"s_cbranch_scc1 {name}_cons")
    vA1, vA2, vB = 10, 12, 14
    srd(A, 4, 46, 47, WS_O, O_SIZE)
    srd(A, 8, 40, 41, 0, 640 * 1280)
    srd(A, 12, 46, 47, WS_U, U_SIZE)
    srd(A, 16, 42, 43, 0, 864 * 1280)
    A("v_lshrrev_b32 v2, 3, v1")
    A("v_and_b32 v3, 7, v1")
    A("s_lshl_b32 s29, s20, 4")
    A("s_add_u32 s29, s29, s27")
    A("v_add_u32 v4, s29, v2")
    A("v_lshrrev_b32 v5, 1, v2")
    for j in range(2):
        if j:
            A("v_or_b32 v6, 4, v5"); A("v_xor_b32 v6, v6, v3")
        else:
            A("v_xor_b32 v6, v5, v3")
        A("v_lshlrev_b32 v6, 4, v6")
        A(f"v_add_u32 v7, {8*j}, v4")
        A("s_movk_i32 s30, 1280")
        A("v_mul_lo_u32 v8, v7, s30")
        A("v_add_u32 v8, v8, v6")
        A(f"v_subrev_u32 v{vA1+j}, {j*1024}, v8")
        A(f"s_movk_i32 s30, {U_PITCH}")
        A("v_mul_lo_u32 v8, v7, s30")
        A("v_add_u32 v8, v8, v6")
        A(f"v_subrev_u32 v{vA2+j}, {j*1024}, v8")
    for j in range(3):
        A("s_mul_i32 s30, s20, 192")
        A(f"s_add_u32 s30, s30, {64*j}")
        A("v_add_u32 v2, s30, v1")
        A("v_mul_u32_u24 v3, 5462, v2")
        A("v_lshrrev_b32 v3, 16, v3")
        A("v_mul_u32_u24 v4, 12, v3")
        A("v_sub_u32 v4, v2, v4")
        A("s_movk_i32 s30, 1280")
        A("v_mul_lo_u32 v3, v3, s30")
        A("v_lshl_add_u32 v3, v4, 4, v3")
        A("v_add_u32 v3, s28, v3")
        A(f"v_subrev_u32 v{vB+j}, {j*1024}, v3") if False else None
        A(f"v_mov_b32 v{vB+j}, v3")
    A("s_lshl_b32 s31, s20, 11")
    A("s_mul_i32 s32, s20, 3072")
    A(f"s_add_u32 s32, s32, {AB}")
    sOA, sOB = 33, 34
    first = [True]
    PER = 2 if onlya else (3 if onlyb else 5)
    def issue(slot, phase):
        sa, va, sb = (4, vA1, 8) if phase == 0 else (12, vA2, 16)
        A(f"s_add_u32 m0, s{sSlot+slot}, s31")
        A("s_nop 0")
        for j in range(2):
            if nodma and not first[0]: continue
            if onlyb: continue
            A(f"buffer_load_dwordx4 v{va+j}, s[{sa}:{sa+3}], s{sOA} offen offset:{j*1024} lds")
        A(f"s_add_u32 m0, s{sSlot+slot}, s32")
        A(f"s_add_u32 s{sOA}, s{sOA}, 128")
        for j in range(3):
            if (nodma and not first[0]) or onlya: continue
            A(f"buffer_load_dwordx4 v{vB+j}, s[{sb}:{sb+3}], s{sOB} offen lds")
            if j < 2:
                A("s_add_u32 m0, m0, 1024")
                A("s_nop 0")
        A(f"s_add_u32 s{sOB}, s{sOB}, {64*1280}")
    A(f"s_mov_b32 s{sOA}, 0")
    A(f"s_mov_b32 s{sOB}, 0")
    for i in range(D):
        issue(i, 0)
    first[0] = False
    def lstep(s_idx):
        rem = min(D, NT - s_idx) - 1
        A(f"s_waitcnt vmcnt({rem*PER})")
        A("s_barrier")
        st = s_idx + D
        if st < NT:
            if st == NA:
                A(f"s_mov_b32 s{sOA}, 0")
                A(f"s_mov_b32 s{sOB}, 0")
            issue(D, 0 if st < NA else 1)
        rotate()
    for s_ in range(0, 5): lstep(s_)
    A("s_mov_b32 s35, 13")
    A.label(f"{name}_ll")
    A(f"s_waitcnt vmcnt({(D-1)*PER})")
    A("s_barrier")
    issue(D, 1)
    rotate()
    A("s_sub_u32 s35, s35, 1")
    A("s_cmp_lg_u32 s35, 0")
    A(f"s_cbranch_scc1 {name}_ll")
    for s_ in range(18, 24): lstep(s_)
    A(f"s_branch {name}_exit")
    A.label(f"{name}_cons")
    A("s_sub_u32 s21, s20, 4")
    A("s_cmp_ge_u32 s21, 3")
    A("s_cselect_b32 s22, 1, 0")
    A("s_mul_i32 s29, s22, 3")
    A("s_sub_u32 s21, s21, s29")
    vXb, vWb, vXc, vWc, vF, vAcc = 10, 14, 16, 20, 24, 56
    def Xf(kk): return vF + 8 * kk
    def Wf(kk): return vF + 8 * kk + 4
    A("v_and_b32 v2, 31, v1")
    A("s_lshl_b32 s29, s22, 5")
    A("v_add_u32 v2, s29, v2")
    A("v_lshlrev_b32 v2, 7, v2")
    A("v_lshrrev_b32 v3, 5, v1")
    A("v_bfe_u32 v4, v1, 1, 3")
    for kk in range(4):
        A(f"v_or_b32 v5, {2*kk}, v3")
        A("v_xor_b32 v5, v5, v4")
        A(f"v_lshl_add_u32 v{vXb+kk}, v5, 4, v2")
    A("v_lshrrev_b32 v2, 5, v1")
    A("v_bfe_u32 v3, v1, 2, 2")
    A("v_lshl_add_u32 v4, v2, 3, v3")
    A("v_mul_u32_u24 v4, 192, v4")
    A("v_bfe_u32 v5, v1, 4, 1")
    A("v_lshl_add_u32 v4, v5, 5, v4")
    A("v_and_b32 v5, 1, v1")
    A("v_lshl_add_u32 v4, v5, 4, v4")
    A("v_bfe_u32 v5, v1, 1, 1")
    A("v_lshl_add_u32 v4, v5, 3, v4")
    A("s_lshl_b32 s29, s21, 6")
    A(f"s_add_u32 s29, s29, {AB}")
    A(f"v_add_u32 v{vWb}, s29, v4")
    for i in range(32):
        A(f"v_mov_b32 v{vAcc+i}, 0")
    accA = vAcc; accB = vAcc + 16
    vG = vAcc + 32
    srd(A, 8, 46, 47, WS_GATE, GATE_SIZE)
    srd(A, 16, 44, 45, 0, 2048 * 1280)
    A("v_and_b32 v2, 31, v1")
    A("s_lshl_b32 s29, s22, 5")
    A("s_add_u32 s29, s29, s27")
    A("v_add_u32 v2, s29, v2")
    A("v_lshlrev_b32 v4, 2, v2")
    A(f"buffer_load_dword v{vG}, v4, s[8:11], 0 offen")
    def cstep(acc):
        A("s_barrier")
        for kk in range(4):
            A(f"v_add_u32 v{vXc+kk}, s{sSlot}, v{vXb+kk}")
        A(f"v_add_u32 v{vWc}, s{sSlot}, v{vWb}")
        for kk in range(4 if not nocomp else 0):
            A(f"ds_read_b128 {vr(Xf(kk),4)}, v{vXc+kk}")
            A(f"ds_read_b64_tr_b16 {vr(Wf(kk),2)}, v{vWc} offset:{kk*3072}")
            A(f"ds_read_b64_tr_b16 {vr(Wf(kk)+2,2)}, v{vWc} offset:{kk*3072+768}")
        for kk in range(4 if not nocomp else 0):
            A(f"s_waitcnt lgkmcnt({9-3*kk})")
            A(f"v_mfma_f32_32x32x16_bf16 {vr(acc,16)}, {vr(Wf(kk),4)}, {vr(Xf(kk),4)}, {vr(acc,16)}")
        rotate()
    A(f"s_mov_b32 s35, {NA}")
    A.label(f"{name}_ca")
    cstep(accA)
    A("s_sub_u32 s35, s35, 1")
    A("s_cmp_lg_u32 s35, 0")
    A(f"s_cbranch_scc1 {name}_ca")
    A(f"s_mov_b32 s35, {NB_}")
    A.label(f"{name}_cb")
    cstep(accB)
    A("s_sub_u32 s35, s35, 1")
    A("s_cmp_lg_u32 s35, 0")
    A(f"s_cbranch_scc1 {name}_cb")
    ts_mark(A, 0, name, kidx)
    A("s_cmp_eq_u32 s24, 6")
    A("s_cselect_b32 s30, s21, 0")
    A("s_cmp_eq_u32 s30, 2")
    A(f"s_cbranch_scc1 {name}_end")
    A("v_lshrrev_b32 v3, 5, v1")
    A("s_lshl_b32 s31, s21, 6")
    A("s_add_u32 s31, s31, s28")
    A("s_movk_i32 s32, 1280")
    A("v_mul_lo_u32 v6, v2, s32")
    A("v_lshl_add_u32 v6, v3, 4, v6")
    A("v_add_u32 v6, s31, v6")
    A("s_waitcnt vmcnt(0)")
    A(f"v_sub_f32 v{vG+1}, 1.0, v{vG}")
    A("s_nop 15")
    for s_ in range(2):
        a = accA + 8 * s_; b = accB + 8 * s_
        for i in range(8):
            A(f"v_mul_f32 v{a+i}, v{a+i}, v{vG}")
            A(f"v_fmac_f32 v{a+i}, v{b+i}, v{vG+1}")
        d = vF + 4 * s_
        for i in range(4):
            A(f"v_cvt_pk_bf16_f32 v{d+i}, v{a+2*i}, v{a+2*i+1}")
        A(f"buffer_store_dwordx4 {vr(d,4)}, v6, s[16:19], 0 offen offset:{s_*32} {store_flags}")
    A.label(f"{name}_end")
    if asmlib.INSTR:
        A("s_waitcnt vmcnt(0)")
    ts_mark(A, 1, name, kidx)
    A.label(f"{name}_exit")
    A("s_endpgm")
    return 128 if asmlib.INSTR else 96, 102
```

```python
import sys
sys.path.insert(0, "dev")
import asmlib, gen_all, k1c, k2k, functools
def mk(name, k1kw={}, k2kw={}, instr=False):
    asmlib.INSTR = instr
    ks = [("k1_kernel", functools.partial(k1c.gen_k1c, **k1kw), 256, 768, 163840),
          ("k2_kernel", functools.partial(k2k.gen_fused, **k2kw), 512, 512, 81920)]
    open(f"dev/{name}.s", "w").write(gen_all.build(ks))
if __name__ == "__main__":
    base = dict(cprio=1, cprio2=0, psleep=2, jit=3, lazy=False)
    mk("cur", k2kw=base); mk("cur_i", k2kw=base, instr=True); mk("cur_fb", k2kw=dict(base, force_fb=True))
```
